```python
import torch

def _softmax(x, axis=-1):
    return torch.softmax(x, dim=axis)
def _gelu(x):
    return torch.nn.functional.gelu(x, approximate="tanh")
def _silu(x):
    return torch.nn.functional.silu(x)
def _sigmoid(x):
    return torch.sigmoid(x)
def _layernorm(x, axis=-1, eps=1e-5):
    m = x.mean(dim=axis, keepdim=True)
    v = x.var(dim=axis, keepdim=True, unbiased=False)
    return (x - m) / torch.sqrt(v + eps)
def _scatter_add(tgt, idx, src, axis=0):
    return tgt.clone().index_add_(axis, idx, src)
def _segment_sum(src, seg, n):
    out = torch.zeros((n,) + src.shape[1:], dtype=src.dtype)
    return out.index_add_(0, seg, src)
def _pad(x, pw):
    flat = tuple(v for pair in reversed(pw) for v in pair)
    return torch.nn.functional.pad(x, flat)

kernel_name = 'recurrent_scan__compressed_kv_cla__swiglu_ffn__decode'

def setup_inputs():

    _w = (lambda a: (lambda t: t.to(torch.bfloat16) if t.is_floating_point() else t)(torch.as_tensor(a)))
    def _A_setup():
        B, H, Sq, Sk, D, M = 4, 32, 1, 4096, 128, 512
        Dc = 4 * D
        return {
            "x": _w((lambda *s: torch.randn(*s, dtype=torch.bfloat16) * 0.05)(B, Sq, M)),
            "c_kv": _w((lambda *s: torch.randn(*s, dtype=torch.bfloat16) * 0.8)(B, Sk, Dc)),
            "w_q": _w((lambda *s: torch.randn(*s, dtype=torch.bfloat16) * 1.6)(M, H, D) * (M ** -0.5)),
            "w_uk": _w((lambda *s: torch.randn(*s, dtype=torch.bfloat16) * 1.6)(Dc, H, D) * (Dc ** -0.5)),
            "w_uv": _w((lambda *s: torch.randn(*s, dtype=torch.bfloat16) * 0.8)(Dc, H, D) * (Dc ** -0.5)),
            "w_o": _w((lambda *s: torch.randn(*s, dtype=torch.bfloat16) * 0.8)(H, D, M) * ((H * D) ** -0.5)),
        }
    _A_in = _A_setup()

    def _B_setup():
        B, S, D, F = 4, 1, 512, 1792
        return {
            "x": _w((lambda *s: torch.randn(*s, dtype=torch.bfloat16) * 0.05)(B, S, D)),
            "w_gate": _w((lambda *s: torch.randn(*s, dtype=torch.bfloat16) * 0.2)(D, F)),
            "w_up": _w((lambda *s: torch.randn(*s, dtype=torch.bfloat16) * 0.2)(D, F)),
            "w_down": _w((lambda *s: torch.randn(*s, dtype=torch.bfloat16) * 0.2)(F, D)),
        }
    _B_in = _B_setup()

    return {
        "A_x": _A_in["x"],
        "A_c_kv": _A_in["c_kv"],
        "A_w_q": _A_in["w_q"],
        "A_w_uk": _A_in["w_uk"],
        "A_w_uv": _A_in["w_uv"],
        "A_w_o": _A_in["w_o"],
        "B_x": _B_in["x"],
        "B_w_gate": _B_in["w_gate"],
        "B_w_up": _B_in["w_up"],
        "B_w_down": _B_in["w_down"],
    }

def reference(A_x, A_c_kv, A_w_q, A_w_uk, A_w_uv, A_w_o, B_x, B_w_gate, B_w_up, B_w_down):
    def _A_ref(x, c_kv, w_q, w_uk, w_uv, w_o):
        B, Sq, M = x.shape[0], x.shape[1], x.shape[2]
        Sk = c_kv.shape[1]
        H, D = w_q.shape[1], w_q.shape[2]
        q = torch.einsum("bqm,mhd->bhqd", x, w_q)
        k = torch.einsum("bkc,chd->bhkd", c_kv, w_uk)
        v = torch.einsum("bkc,chd->bhkd", c_kv, w_uv)
        scores = torch.einsum("bhqd,bhkd->bhqk", q, k) * (D ** -0.5)
        off = Sk - Sq
        qi = torch.arange(Sq)[:, None]
        kj = torch.arange(Sk)[None, :]
        cmask = kj <= (qi + off)
        scores = torch.where(cmask[None, None], scores, -1e9)
        p = _softmax(scores, axis=-1)
        ctx = torch.einsum("bhqk,bhkd->bhqd", p, v)
        return torch.einsum("bhqd,hdm->bqm", ctx, w_o)

    def _B_ref(x, w_gate, w_up, w_down):
        g = _silu(x @ w_gate)
        u = x @ w_up
        return (g * u) @ w_down

    x = A_x
    xn = _layernorm(x, axis=-1)
    s = _A_ref(xn, A_c_kv, A_w_q, A_w_uk, A_w_uv, A_w_o)
    g = _silu(_B_ref(xn, B_w_gate, B_w_up, B_w_down))
    return x + s * g
```

```python
import sys

NAME = "recurrent_scan__compressed_kv_cla__swiglu_ffn__decode"

WS_QLAT = 0x000000
WS_GU = 0x040000
WS_H1 = 0x080000
WS_STATS = 0x090000
WS_SP = 0x100000
WS_PART = 0x400000
WS_BYTES = 0x10000000
SP_ROWS = 156

QSCALE = (128 ** -0.5) * 1.4426950408889634
LOG2E = 1.4426950408889634


def f2u(x):
    import struct
    return struct.unpack("<I", struct.pack("<f", x))[0]


class A:
    def __init__(self):
        self.l = []

    def __call__(self, s):
        for line in s.strip("\n").split("\n"):
            self.l.append("    " + line.strip())

    def label(self, s):
        self.l.append(s + ":")

    def raw(self, s):
        self.l.append(s)

    def text(self):
        return "\n".join(self.l) + "\n"


def srd(a, d, lo, hi, nbytes):
    a(f"""s_mov_b32 s{d}, s{lo}
    s_mov_b32 s{d+1}, s{hi}
    s_mov_b32 s{d+2}, {nbytes}
    s_mov_b32 s{d+3}, 0x00020000""")


def header(a, name):
    a.raw(f".globl {name}")
    a.raw(".p2align 8")
    a.raw(f".type {name},@function")
    a.label(name)


def kd(name, vgpr, sgpr=96):
    acc = (vgpr + 3) // 4 * 4
    return f""".p2align 6
.amdhsa_kernel {name}
  .amdhsa_next_free_vgpr {vgpr}
  .amdhsa_next_free_sgpr {sgpr}
  .amdhsa_accum_offset {acc}
  .amdhsa_group_segment_fixed_size 0
  .amdhsa_kernarg_size 104
  .amdhsa_user_sgpr_count 2
  .amdhsa_user_sgpr_kernarg_segment_ptr 1
  .amdhsa_system_sgpr_workgroup_id_x 1
.end_amdhsa_kernel
"""


def wave_sum(a, v, t):
    for r in (8, 4, 2, 1):
        a(f"s_nop 1\nv_add_f32_dpp {v}, {v}, {v} row_ror:{r} row_mask:0xf bank_mask:0xf")
    xg_reduce(a, v, t, "v_add_f32")


def xg_reduce(a, v, t, op):
    a(f"""v_mov_b32 {t}, {v}
    s_nop 1
    v_permlane16_swap_b32 {v}, {t}
    s_nop 1
    {op} {v}, {v}, {t}
    v_mov_b32 {t}, {v}
    s_nop 1
    v_permlane32_swap_b32 {v}, {t}
    s_nop 1
    {op} {v}, {v}, {t}""")


def k1():
    a = A()
    name = "k1_kernel"
    header(a, name)
    L_WQ = 0
    L_FT = 131072
    L_XN = L_FT + 16384
    L_QP = L_XN + 4096
    L_Q = L_QP + 8192
    lds = L_Q + 1024
    a("""s_load_dwordx2 s[8:9], s[0:1], 0
    s_load_dwordx4 s[12:15], s[0:1], 16
    s_load_dwordx4 s[16:19], s[0:1], 56
    s_load_dwordx2 s[10:11], s[0:1], 96
    s_cmp_ge_u32 s2, 256
    s_cbranch_scc1 K1_END
    v_and_b32 v1, 63, v0
    v_lshrrev_b32 v2, 6, v0
    s_and_b32 s3, s2, 7
    v_readfirstlane_b32 s5, v2
    s_lshr_b32 s4, s2, 3
    s_and_b32 s6, s4, 3
    s_lshl_b32 s6, s6, 3
    s_or_b32 s3, s3, s6            ; s3 = h
    s_lshr_b32 s4, s2, 5           ; s4 = j
    s_min_u32 s6, s2, 223
    s_and_b32 s44, s6, 3           ; ks
    s_lshr_b32 s45, s6, 2          ; cb 0..55
    s_cmp_ge_u32 s45, 28
    s_cselect_b32 s46, 1, 0        ; mat
    s_mul_i32 s47, s46, 28
    s_sub_u32 s47, s45, s47        ; cbk 0..27
    v_lshrrev_b32 v3, 4, v1        ; g = l>>4
    v_and_b32 v4, 15, v1           ; i16
    s_waitcnt lgkmcnt(0)""")
    srd(a, 20, 8, 9, 4096)
    srd(a, 24, 12, 13, 4194304)
    srd(a, 28, 14, 15, 4194304)
    a("""s_cmp_eq_u32 s46, 1
    s_cselect_b32 s16, s18, s16
    s_cselect_b32 s17, s19, s17""")
    srd(a, 32, 16, 17, 1835008)
    srd(a, 36, 10, 11, WS_BYTES)
    a("""s_lshl_b32 s6, s5, 10
    v_lshlrev_b32 v5, 4, v1
    buffer_load_dwordx4 v[8:11], v5, s[20:23], s6 offen""")
    a("""s_lshl_b32 s6, s4, 6
    s_lshl_b32 s7, s5, 4
    s_add_u32 s6, s6, s7
    s_lshl_b32 s6, s6, 13
    s_lshl_b32 s7, s3, 8
    s_add_u32 s6, s6, s7
    v_lshlrev_b32 v5, 13, v4
    v_lshl_add_u32 v5, v3, 4, v5""")
    for t in range(4):
        a(f"buffer_load_dwordx4 v[{12+4*t}:{15+4*t}], v5, s[28:31], s6 offen offset:{64*t}")
    a("""v_lshrrev_b32 v5, 3, v1
    s_movk_i32 s6, 3584
    v_mul_lo_u32 v5, v5, s6
    v_and_b32 v6, 7, v1
    v_lshlrev_b32 v7, 1, v3
    v_and_b32 v7, 6, v7
    v_xor_b32 v6, v6, v7
    v_lshl_add_u32 v28, v6, 4, v5
    s_lshl_b32 s6, s44, 7          ; 128*ks
    s_lshl_b32 s7, s5, 5
    s_add_u32 s6, s6, s7
    s_mul_i32 s6, s6, 3584
    s_lshl_b32 s7, s47, 7
    s_add_u32 s6, s6, s7           ; soffset
    s_lshl_b32 s7, s5, 12          ; w*4096
    """)
    a(f"s_add_u32 m0, s7, {L_FT}")
    for i in range(4):
        a("s_nop 0\nbuffer_load_dwordx4 v28, s[32:35], s6 offen lds")
        if i < 3:
            a(f"s_add_u32 s6, s6, {8*3584}\ns_add_u32 m0, m0, 1024")
    a("""v_lshlrev_b32 v5, 1, v3
    v_xor_b32 v5, v5, v4
    v_lshlrev_b32 v5, 4, v5
    v_lshl_add_u32 v29, v3, 13, v5
    v_xor_b32 v30, 0x80, v29
    s_lshl_b32 s6, s5, 20          ; 128w*8192
    s_lshl_b32 s7, s3, 8
    s_add_u32 s6, s6, s7
    s_lshl_b32 m0, s5, 15          ; 128w*256""")
    for i in range(32):
        a(f"s_nop 0\nbuffer_load_dwordx4 v{29 + (i & 1)}, s[24:27], s6 offen lds")
        if i < 31:
            a(f"s_add_u32 s6, s6, {4*8192}\ns_add_u32 m0, m0, 1024")
    a("""v_bfe_u32 v5, v1, 2, 2         ; r
    v_and_b32 v6, 3, v1            ; c'
    v_and_b32 v7, 1, v3
    v_lshl_add_u32 v7, v7, 2, v5   ; 4(g&1)+r
    v_lshlrev_b32 v7, 1, v7        ; f
    v_lshl_add_u32 v31, v3, 2, v5  ; rowl = 4g+r
    s_lshl_b32 s6, s5, 7
    v_add_u32 v32, s6, v31         ; 128w + rowl
    v_lshlrev_b32 v32, 8, v32      ; *256
    v_and_b32 v33, 1, v6
    v_lshl_add_u32 v32, v33, 3, v32   ; + (c'&1)*8
    v_lshrrev_b32 v34, 1, v6       ; c'>>1
    v_lshl_add_u32 v32, v34, 4, v32   ; + (c'>>1)*16""")
    for n in range(8):
        a(f"v_xor_b32 v35, {2*n}, v7\nv_lshl_add_u32 v{36+n}, v35, 4, v32")
    a(f"""v_and_b32 v35, 1, v3
    v_lshlrev_b32 v35, 1, v35
    v_lshrrev_b32 v44, 1, v5
    v_add_u32 v35, v35, v44
    v_lshlrev_b32 v35, 1, v35       ; f3
    s_lshl_b32 s6, s5, 1
    v_xor_b32 v35, s6, v35
    v_add_u32 v35, v35, v34
    v_lshlrev_b32 v35, 4, v35
    v_lshl_add_u32 v35, v31, 7, v35
    v_lshl_add_u32 v35, v33, 3, v35
    v_add_u32 v44, {L_FT}, v35""")
    a(f"""v_lshlrev_b32 v45, 10, v6
    v_lshl_add_u32 v45, v3, 4, v45
    v_add_u32 v45, {L_XN}, v45""")
    a(f"""v_lshrrev_b32 v46, 2, v1
    v_lshlrev_b32 v46, 6, v46
    v_lshl_add_u32 v46, v33, 5, v46
    v_lshl_add_u32 v46, v34, 3, v46
    s_lshl_b32 s6, s5, 10
    s_add_u32 s6, s6, {L_XN}
    v_add_u32 v46, s6, v46""")
    a("s_waitcnt vmcnt(40)")
    for i in range(4):
        a(f"v_lshlrev_b32 v{48+2*i}, 16, v{8+i}\nv_and_b32 v{49+2*i}, 0xffff0000, v{8+i}")
    a("""v_add_f32 v56, v48, v49
    v_add_f32 v57, v50, v51
    v_add_f32 v58, v52, v53
    v_add_f32 v59, v54, v55
    v_add_f32 v56, v56, v57
    v_add_f32 v58, v58, v59
    v_add_f32 v56, v56, v58""")
    wave_sum(a, "v56", "v57")
    a(f"v_mul_f32 v56, {f2u(1.0/512):#x}, v56")
    for i in range(8):
        a(f"v_sub_f32 v{48+i}, v{48+i}, v56")
    a("v_mul_f32 v57, v48, v48")
    for i in range(1, 8):
        a(f"v_fmac_f32 v57, v{48+i}, v{48+i}")
    wave_sum(a, "v57", "v58")
    a(f"""v_mov_b32 v58, {f2u(1e-5):#x}
    v_fmac_f32 v58, {f2u(1.0/512):#x}, v57
    v_rsq_f32 v58, v58
    s_nop 0""")
    for i in range(8):
        a(f"v_mul_f32 v{48+i}, v{48+i}, v58")
    for i in range(4):
        a(f"v_cvt_pk_bf16_f32 v{60+i}, v{48+2*i}, v{49+2*i}")
    a("""ds_write_b64 v46, v[60:61]
    ds_write_b64 v46, v[62:63] offset:16
    s_waitcnt lgkmcnt(0)
    s_barrier""")
    a("""s_lshl_b32 s6, s5, 8
    v_add_u32 v47, s6, v45""")
    for tt in range(4):
        a(f"ds_read_b128 v[{64+4*tt}:{67+4*tt}], v47 offset:{64*tt}")
    for tt in range(4):
        a(f"s_waitcnt vmcnt({24-8*tt})")
        for n in range(8):
            a(f"ds_read_b64_tr_b16 v[{112+4*n}:{113+4*n}], v{36+n} offset:{8192*tt}")
            a(f"ds_read_b64_tr_b16 v[{114+4*n}:{115+4*n}], v{36+n} offset:{8192*tt+4096}")
        for n in range(8):
            a(f"s_waitcnt lgkmcnt({14-2*n})")
            c = "0" if tt == 0 else f"v[{80+4*n}:{83+4*n}]"
            a(f"v_mfma_f32_16x16x32_bf16 v[{80+4*n}:{83+4*n}], v[{112+4*n}:{115+4*n}], v[{64+4*tt}:{67+4*tt}], {c}")
    a(f"""v_lshlrev_b32 v47, 9, v4        ; b*512
    v_lshl_add_u32 v47, v3, 4, v47  ; + g*16
    s_lshl_b32 s6, s5, 11
    s_add_u32 s6, s6, {L_QP}
    v_add_u32 v47, s6, v47
    v_cmp_gt_u32 vcc, 4, v4
    s_and_saveexec_b64 s[48:49], vcc
    s_nop 4""")
    for n in range(8):
        a(f"ds_write_b128 v47, v[{80+4*n}:{83+4*n}] offset:{64*n}")
    a("""s_mov_b64 exec, s[48:49]
    s_waitcnt lgkmcnt(0)
    s_barrier""")
    a(f"""s_lshl_b32 s6, s5, 9
    s_add_u32 s6, s6, {L_QP}
    v_lshlrev_b32 v47, 3, v1
    v_add_u32 v47, s6, v47""")
    for w in range(4):
        a(f"ds_read_b64 v[{48+2*w}:{49+2*w}], v47 offset:{2048*w}")
    a("""s_lshl_b32 s6, s44, 8
    v_add_u32 v59, s6, v45""")
    for t in range(4):
        a(f"ds_read_b128 v[{64+4*t}:{67+4*t}], v59 offset:{64*t}")
    for t in range(4):
        a(f"ds_read_b64_tr_b16 v[{112+4*t}:{113+4*t}], v44 offset:{4096*t}")
        a(f"ds_read_b64_tr_b16 v[{114+4*t}:{115+4*t}], v44 offset:{4096*t+2048}")
    a("""s_waitcnt lgkmcnt(12)
    v_add_f32 v48, v48, v50
    v_add_f32 v49, v49, v51
    v_add_f32 v52, v52, v54
    v_add_f32 v53, v53, v55
    v_add_f32 v48, v48, v52
    v_add_f32 v49, v49, v53
    v_cvt_pk_bf16_f32 v48, v48, v49""")
    a(f"""s_lshl_b32 s6, s5, 8
    s_add_u32 s6, s6, {L_Q}
    v_lshlrev_b32 v47, 2, v1
    v_add_u32 v47, s6, v47
    ds_write_b32 v47, v48
    s_waitcnt lgkmcnt(0)
    s_barrier""")
    a(f"""v_lshlrev_b32 v47, 8, v6
    v_lshl_add_u32 v47, v3, 4, v47
    v_add_u32 v47, {L_Q}, v47""")
    for t in range(4):
        a(f"ds_read_b128 v[{80+4*t}:{83+4*t}], v47 offset:{64*t}")
    for t in range(4):
        c = "0" if t == 0 else "v[96:99]"
        a(f"v_mfma_f32_16x16x32_bf16 v[96:99], v[{112+4*t}:{115+4*t}], v[{64+4*t}:{67+4*t}], {c}")
    a("s_waitcnt lgkmcnt(0)")
    for t in range(4):
        c = "0" if t == 0 else "v[100:103]"
        a(f"v_mfma_f32_16x16x32_bf16 v[100:103], v[{12+4*t}:{15+4*t}], v[{80+4*t}:{83+4*t}], {c}")
    a(f"""s_lshl_b32 s6, s44, 1
    s_add_u32 s6, s6, s46
    s_mul_i32 s6, s6, {4*7168}
    s_lshl_b32 s7, s47, 8
    s_add_u32 s6, s6, s7
    s_lshl_b32 s7, s5, 6
    s_add_u32 s6, s6, s7
    s_add_u32 s6, s6, {WS_GU}
    s_movk_i32 s7, 7168
    v_mul_lo_u32 v47, v4, s7
    v_lshl_add_u32 v47, v3, 4, v47""")
    a(f"""s_lshr_b32 s7, s3, 4            ; hg
    s_lshl_b32 s7, s7, 4
    s_lshl_b32 s50, s4, 1
    s_add_u32 s7, s7, s50
    s_lshr_b32 s50, s5, 1
    s_add_u32 s7, s7, s50           ; hg*16 + t'
    s_lshl_b32 s7, s7, 6
    s_and_b32 s50, s5, 1
    s_lshl_b32 s50, s50, 5
    s_add_u32 s7, s7, s50           ; + 2(w&1)*16
    s_and_b32 s50, s3, 15
    s_add_u32 s7, s7, s50
    s_lshl_b32 s7, s7, 4
    s_add_u32 s7, s7, {WS_QLAT}
    v_lshlrev_b32 v48, 15, v4       ; b*2*16*64*16 = b*32768
    v_lshrrev_b32 v49, 1, v3
    v_lshl_add_u32 v48, v49, 8, v48 ; (g>>1)*16*16
    v_and_b32 v49, 1, v3
    v_lshl_add_u32 v48, v49, 3, v48
    s_mov_b32 s50, {f2u(QSCALE):#x}
    v_mul_f32 v100, s50, v100
    v_mul_f32 v101, s50, v101
    v_mul_f32 v102, s50, v102
    v_mul_f32 v103, s50, v103
    v_cvt_pk_bf16_f32 v100, v100, v101
    v_cvt_pk_bf16_f32 v101, v102, v103
    v_cmp_gt_u32 vcc, 4, v4
    s_and_saveexec_b64 s[48:49], vcc
    buffer_store_dwordx2 v[100:101], v48, s[36:39], s7 offen
    s_cmp_ge_u32 s2, 224
    s_cbranch_scc1 K1_END
    buffer_store_dwordx4 v[96:99], v47, s[36:39], s6 offen""")
    a.label("K1_END")
    a("s_endpgm")
    return a.text(), name, 256, lds, 144


def k2():
    a = A()
    name = "k2_kernel"
    header(a, name)
    L_T = 0
    L_QL = 131072
    L_P = L_QL + 16384
    L_MX = L_P + 4096
    L_LS = L_MX + 256
    lds = L_LS + 256
    a("""s_load_dwordx2 s[8:9], s[0:1], 8
    s_load_dwordx2 s[10:11], s[0:1], 96
    s_cmp_ge_u32 s2, 256
    s_cbranch_scc1 K2_END
    v_and_b32 v1, 63, v0
    v_lshrrev_b32 v2, 6, v0
    s_and_b32 s3, s2, 7
    v_readfirstlane_b32 s5, v2
    s_lshr_b32 s4, s2, 3
    s_and_b32 s6, s4, 1            ; hg
    s_lshr_b32 s4, s4, 1
    s_lshl_b32 s4, s4, 3
    s_or_b32 s3, s3, s4            ; T = tile 0..127
    s_lshr_b32 s4, s3, 5           ; b
    s_and_b32 s7, s3, 31           ; s
    s_min_u32 s44, s2, 27          ; h1 job
    v_lshrrev_b32 v3, 4, v1        ; g
    v_and_b32 v4, 15, v1           ; i16
    s_waitcnt lgkmcnt(0)""")
    srd(a, 20, 8, 9, 16777216)
    srd(a, 36, 10, 11, WS_BYTES)
    a(f"""s_mul_i32 s45, s5, 7168
    s_lshl_b32 s46, s44, 8
    s_add_u32 s45, s45, s46
    s_add_u32 s45, s45, {WS_GU}
    v_lshlrev_b32 v5, 2, v1""")
    for km in range(8):
        a(f"buffer_load_dword v{8+km}, v5, s[36:39], s45 offen")
        if km < 7:
            a(f"s_add_u32 s45, s45, {4*7168}")
    a(f"""s_lshl_b32 s45, s4, 1
    s_add_u32 s45, s45, s6
    s_lshl_b32 s45, s45, 14
    s_lshl_b32 s46, s5, 12
    s_add_u32 s45, s45, s46
    s_add_u32 s45, s45, {WS_QLAT}
    s_add_u32 m0, s46, {L_QL}
    v_lshlrev_b32 v5, 4, v1""")
    for i in range(4):
        a(f"buffer_load_dwordx4 v5, s[36:39], s45 offen offset:{1024*i} lds")
    for k in range(8):
        a(f"v_xor_b32 v{16+k}, {k << 5}, v5")
    a("""s_lshl_b32 s45, s3, 17          ; T*128 KiB
    s_lshl_b32 s46, s5, 15
    s_add_u32 s45, s45, s46
    s_mov_b32 m0, s46""")
    for i in range(32):
        if i % 4 == 0:
            a("s_nop 0")
        a(f"buffer_load_dwordx4 v{16 + (i & 7)}, s[20:23], s45 offen offset:{1024*(i&3)} lds")
        if i % 4 == 3 and i < 31:
            a("s_add_u32 s45, s45, 4096\ns_add_u32 m0, m0, 4096")
    a("""v_and_b32 v6, 7, v4
    v_lshlrev_b32 v6, 1, v6         ; f
    s_lshl_b32 s45, s5, 5
    v_add_u32 v7, s45, v4
    v_lshlrev_b32 v7, 10, v7""")
    for tq in range(4):
        a(f"v_add_u32 v24, {4*tq}, v3\nv_xor_b32 v24, v24, v6\nv_lshl_add_u32 v{26+tq}, v24, 4, v7")
    a(f"v_lshlrev_b32 v30, 4, v1\nv_add_u32 v30, {L_QL}, v30")
    a("""v_bfe_u32 v5, v1, 2, 2         ; r
    v_and_b32 v6, 3, v1            ; c'
    v_and_b32 v7, 1, v3
    v_lshl_add_u32 v7, v7, 2, v5
    v_lshlrev_b32 v7, 1, v7        ; f
    v_lshl_add_u32 v24, v3, 2, v5  ; 4g+r
    v_lshlrev_b32 v24, 10, v24
    v_and_b32 v25, 1, v6
    v_lshl_add_u32 v24, v25, 3, v24
    v_lshrrev_b32 v25, 1, v6
    v_lshl_add_u32 v24, v25, 4, v24
    s_lshl_b32 s45, s5, 8          ; 16w*16
    v_add_u32 v24, s45, v24""")
    for n in range(8):
        a(f"v_xor_b32 v25, {2*n}, v7\nv_lshl_add_u32 v{32+n}, v25, 4, v24\nv_add_u32 v{40+n}, 0x10000, v{32+n}")
    a("s_waitcnt vmcnt(32)\ns_barrier")
    for t in range(16):
        a(f"ds_read_b128 v[{64+4*t}:{67+4*t}], v30 offset:{1024*t}")
    for kb in range(2):
        a(f"s_waitcnt vmcnt({16-16*kb})")
        for t in range(16):
            a(f"ds_read_b128 v[{128+4*t}:{131+4*t}], v{26+(t&3)} offset:{(t>>2)*256+kb*16384}")
        for t in range(16):
            a(f"s_waitcnt lgkmcnt({15-t})")
            c = "0" if t == 0 else f"v[{48+4*kb}:{51+4*kb}]"
            a(f"v_mfma_f32_16x16x32_bf16 v[{48+4*kb}:{51+4*kb}], v[{128+4*t}:{131+4*t}], v[{64+4*t}:{67+4*t}], {c}")
    a(f"""v_lshlrev_b32 v56, 4, v4       ; head*16
    s_lshl_b32 s45, s5, 2
    s_add_u32 s46, s45, {L_MX}
    v_add_u32 v57, s46, v56         ; MX[head][w]
    v_add_u32 v58, {L_MX}, v56
    s_nop 4
    v_max3_f32 v59, v48, v49, v50
    v_max3_f32 v59, v59, v51, v52
    v_max3_f32 v59, v59, v53, v54
    v_max_f32 v59, v59, v55""")
    xg_reduce(a, "v59", "v60", "v_max_f32")
    a(f"""ds_write_b32 v57, v59
    s_waitcnt lgkmcnt(0)
    s_barrier
    ds_read_b128 v[60:63], v58
    s_waitcnt lgkmcnt(0)
    v_max3_f32 v59, v60, v61, v62
    v_max_f32 v59, v59, v63         ; m""")
    for i in range(8):
        a(f"v_sub_f32 v{48+i}, v{48+i}, v59")
    for i in range(8):
        a(f"v_exp_f32 v{48+i}, v{48+i}")
    a("""s_nop 0
    v_add_f32 v60, v48, v49
    v_add_f32 v61, v50, v51
    v_add_f32 v62, v52, v53
    v_add_f32 v63, v54, v55
    v_add_f32 v60, v60, v61
    v_add_f32 v62, v62, v63
    v_add_f32 v60, v60, v62""")
    for i in range(4):
        a(f"v_cvt_pk_bf16_f32 v{48+i}, v{48+2*i}, v{49+2*i}")
    a(f"""s_lshl_b32 s45, s5, 10
    s_add_u32 s45, s45, {L_P}
    v_lshlrev_b32 v61, 4, v1
    v_add_u32 v62, s45, v61
    ds_write_b128 v62, v[48:51]""")
    xg_reduce(a, "v60", "v63", "v_add_f32")
    a(f"""v_add_u32 v57, {L_LS-L_MX}, v57
    ds_write_b32 v57, v60
    v_add_u32 v61, {L_P}, v61
    s_waitcnt lgkmcnt(0)
    s_barrier""")
    for u in range(4):
        a(f"ds_read_b128 v[{64+4*u}:{67+4*u}], v61 offset:{1024*u}")
    a(f"ds_read_b128 v[60:63], v58 offset:{L_LS-L_MX}")
    def pv_reads(u):
        base = 128 + 32 * (u & 1)
        ab = 32 if u < 2 else 40
        off = (u & 1) * 32768
        for n in range(8):
            a(f"ds_read_b64_tr_b16 v[{base+4*n}:{base+4*n+1}], v{ab+n} offset:{off}")
            a(f"ds_read_b64_tr_b16 v[{base+4*n+2}:{base+4*n+3}], v{ab+n} offset:{off+16384}")
    pv_reads(0)
    for u in range(4):
        if u < 3:
            pv_reads(u + 1)
        base = 128 + 32 * (u & 1)
        for n in range(8):
            rem = (16 if u < 3 else 0) + 14 - 2 * n
            a(f"s_waitcnt lgkmcnt({min(rem, 15)})")
            c = "0" if u == 0 else f"v[{80+4*n}:{83+4*n}]"
            a(f"v_mfma_f32_16x16x32_bf16 v[{80+4*n}:{83+4*n}], v[{base+4*n}:{base+4*n+3}], v[{64+4*u}:{67+4*u}], {c}")
    a(f"""v_add_f32 v60, v60, v61
    v_add_f32 v62, v62, v63
    v_add_f32 v60, v60, v62         ; L
    s_lshl_b32 s45, s6, 4           ; hg*16
    s_lshl_b32 s45, s45, 2
    s_add_u32 s45, s45, s4          ; (hg*16)*4 + b
    s_lshl_b32 s45, s45, 2
    s_and_b32 s46, s7, 3
    s_add_u32 s45, s45, s46
    s_lshl_b32 s45, s45, 3
    s_lshr_b32 s46, s7, 2
    s_add_u32 s45, s45, s46
    s_lshl_b32 s45, s45, 3
    s_add_u32 s45, s45, {WS_STATS}
    v_lshlrev_b32 v56, 10, v4       ; head * (4*4*8*8=1024)
    v_mov_b32 v61, v60
    v_mov_b32 v60, v59
    v_cmp_gt_u32 vcc, 16, v1
    s_cmp_lg_u32 s5, 0
    s_cbranch_scc1 K2_NOSTAT
    s_and_saveexec_b64 s[48:49], vcc
    buffer_store_dwordx2 v[60:61], v56, s[36:39], s45 offen
    s_mov_b64 exec, s[48:49]""")
    a.label("K2_NOSTAT")
    a(f"""s_lshl_b32 s45, s6, 6           ; hg*16*4
    s_add_u32 s45, s45, s5
    s_lshl_b32 s45, s45, 2
    s_add_u32 s45, s45, s4
    s_lshl_b32 s45, s45, 5
    s_add_u32 s45, s45, s7
    s_lshl_b32 s45, s45, 8
    s_add_u32 s45, s45, {WS_PART}
    v_lshlrev_b32 v56, 17, v4       ; head * 4*4*32*256
    v_lshl_add_u32 v56, v3, 4, v56""")
    for np_ in range(4):
        b0 = 80 + 8 * np_
        a(f"""v_cvt_pk_bf16_f32 v{b0}, v{b0}, v{b0+1}
        v_cvt_pk_bf16_f32 v{b0+1}, v{b0+2}, v{b0+3}
        v_cvt_pk_bf16_f32 v{b0+2}, v{b0+4}, v{b0+5}
        v_cvt_pk_bf16_f32 v{b0+3}, v{b0+6}, v{b0+7}
        buffer_store_dwordx4 v[{b0}:{b0+3}], v56, s[36:39], s45 offen offset:{64*np_}""")
    a(f"""s_cmp_ge_u32 s2, 28
    s_cbranch_scc1 K2_END
    v_add_f32 v8, v8, v10
    v_add_f32 v12, v12, v14
    v_add_f32 v9, v9, v11
    v_add_f32 v13, v13, v15
    v_add_f32 v8, v8, v12           ; g
    v_add_f32 v9, v9, v13           ; u
    v_mul_f32 v10, {f2u(-LOG2E):#x}, v8
    v_exp_f32 v10, v10
    s_nop 0
    v_add_f32 v10, 1.0, v10
    v_rcp_f32 v10, v10
    s_nop 0
    v_mul_f32 v8, v8, v10
    v_mul_f32 v8, v8, v9
    v_cvt_pk_bf16_f32 v8, v8, v8""")
    a(f"""v_and_b32 v10, 32, v1
    v_bfe_u32 v11, v1, 2, 2
    v_lshl_add_u32 v10, v11, 3, v10
    v_bfe_u32 v11, v1, 4, 1
    v_lshl_add_u32 v10, v11, 2, v10
    v_and_b32 v11, 3, v1
    v_add_u32 v10, v10, v11
    v_lshlrev_b32 v10, 1, v10
    s_mul_i32 s45, s5, 3584
    s_lshl_b32 s46, s44, 7
    s_add_u32 s45, s45, s46
    s_add_u32 s45, s45, {WS_H1}
    buffer_store_short v8, v10, s[36:39], s45 offen""")
    a.label("K2_END")
    a("s_endpgm")
    return a.text(), name, 256, lds, 192


def k3():
    a = A()
    name = "k3_kernel"
    header(a, name)
    L_UV = 0
    L_WO = 32768
    L_DN = L_WO + 65536
    L_CL = L_DN + 8192
    L_CT = L_CL + 1024
    lds = L_CT + 1024
    a("""s_load_dwordx4 s[12:15], s[0:1], 32
    s_load_dwordx2 s[8:9], s[0:1], 72
    s_load_dwordx2 s[10:11], s[0:1], 96
    s_cmp_ge_u32 s2, 256
    s_cbranch_scc1 K3_END
    v_and_b32 v1, 63, v0
    v_lshrrev_b32 v2, 6, v0
    s_and_b32 s3, s2, 7
    v_readfirstlane_b32 s5, v2
    s_lshr_b32 s4, s2, 3
    s_and_b32 s6, s4, 3
    s_lshl_b32 s6, s6, 3
    s_or_b32 s3, s3, s6            ; h
    s_lshr_b32 s4, s2, 5           ; j
    s_and_b32 s6, s4, 3            ; cj
    s_lshr_b32 s7, s4, 2           ; mj
    s_min_u32 s44, s2, 223
    s_lshr_b32 s45, s44, 3         ; fs 0..27
    s_and_b32 s44, s44, 7          ; ms 0..7
    v_lshrrev_b32 v3, 4, v1        ; g
    v_and_b32 v4, 15, v1           ; i16
    s_waitcnt lgkmcnt(0)""")
    srd(a, 20, 12, 13, 4194304)
    srd(a, 24, 14, 15, 4194304)
    srd(a, 28, 8, 9, 1835008)
    srd(a, 36, 10, 11, WS_BYTES)
    a(f"""s_lshl_b32 s46, s3, 2
    s_add_u32 s46, s46, s5
    s_lshl_b32 s46, s46, 8
    s_add_u32 s46, s46, {WS_STATS}
    v_lshlrev_b32 v5, 6, v3""")
    for i in range(4):
        a(f"buffer_load_dwordx4 v[{8+4*i}:{11+4*i}], v5, s[36:39], s46 offen offset:{16*i}")
    a(f"""s_lshl_b32 s46, s3, 2
    s_add_u32 s46, s46, s6
    s_lshl_b32 s46, s46, 2
    s_add_u32 s46, s46, s5
    s_lshl_b32 s46, s46, 13
    s_add_u32 s46, s46, {WS_PART}
    s_add_u32 s47, s46, 4096
    v_lshlrev_b32 v5, 4, v1""")
    for i in range(8):
        a(f"buffer_load_dwordx4 v[{24+4*i}:{27+4*i}], v5, s[36:39], s{46 if i < 4 else 47} offen offset:{1024*(i&3)}")
    a(f"""v_and_b32 v6, 3, v1
    s_movk_i32 s46, 3584
    v_mul_lo_u32 v7, v6, s46
    v_lshl_add_u32 v7, v3, 4, v7
    s_lshl_b32 s46, s45, 7
    s_add_u32 s46, s46, {WS_H1}
    buffer_load_dwordx4 v[56:59], v7, s[36:39], s46 offen
    buffer_load_dwordx4 v[60:63], v7, s[36:39], s46 offen offset:64""")
    a("""v_lshlrev_b32 v5, 1, v3
    v_xor_b32 v5, v5, v4
    v_lshlrev_b32 v5, 4, v5
    v_lshl_add_u32 v64, v3, 13, v5
    v_xor_b32 v65, 0x80, v64
    s_lshl_b32 s46, s6, 7
    s_lshl_b32 s47, s5, 5
    s_add_u32 s46, s46, s47
    s_lshl_b32 s46, s46, 13
    s_lshl_b32 s47, s3, 8
    s_add_u32 s46, s46, s47""")
    a(f"s_lshl_b32 m0, s5, 13")
    for i in range(8):
        a(f"s_nop 0\nbuffer_load_dwordx4 v{64+(i&1)}, s[20:23], s46 offen lds")
        if i < 7:
            a(f"s_add_u32 s46, s46, {4*8192}\ns_add_u32 m0, m0, 1024")
    a("""v_lshrrev_b32 v5, 5, v1        ; l>>5
    v_and_b32 v6, 31, v1""")
    for q in range(4):
        a(f"""v_add_u32 v7, {2*q}, v5
        v_lshlrev_b32 v7, 1, v7
        v_xor_b32 v7, v7, v6
        v_lshlrev_b32 v7, 4, v7
        v_lshl_add_u32 v{66+q}, v5, 10, v7""")
    a(f"""s_lshl_b32 s46, s3, 17
    s_lshl_b32 s47, s5, 15
    s_add_u32 s46, s46, s47
    s_lshl_b32 s47, s7, 9
    s_add_u32 s46, s46, s47
    s_lshl_b32 s47, s5, 14
    s_add_u32 m0, s47, {L_WO}""")
    for i in range(16):
        a(f"s_nop 0\nbuffer_load_dwordx4 v{66+(i&3)}, s[24:27], s46 offen lds")
        if i < 15:
            a("s_add_u32 s46, s46, 2048\ns_add_u32 m0, m0, 1024")
    a(f"""v_lshrrev_b32 v5, 3, v1
    v_and_b32 v6, 7, v1
    v_lshlrev_b32 v7, 1, v3
    v_and_b32 v7, 6, v7
    v_xor_b32 v6, v6, v7
    v_lshlrev_b32 v6, 4, v6
    v_lshl_add_u32 v70, v5, 10, v6
    s_lshl_b32 s46, s45, 6
    s_lshl_b32 s47, s5, 4
    s_add_u32 s46, s46, s47
    s_lshl_b32 s46, s46, 10
    s_lshl_b32 s47, s44, 7
    s_add_u32 s46, s46, s47
    s_lshl_b32 s47, s5, 11
    s_add_u32 m0, s47, {L_DN}
    s_nop 0
    buffer_load_dwordx4 v70, s[28:31], s46 offen lds
    s_add_u32 s46, s46, 8192
    s_add_u32 m0, m0, 1024
    s_nop 0
    buffer_load_dwordx4 v70, s[28:31], s46 offen lds""")
    a("""v_bfe_u32 v5, v1, 2, 2         ; r
    v_and_b32 v6, 3, v1            ; c'
    v_and_b32 v7, 1, v3
    v_lshl_add_u32 v7, v7, 2, v5
    v_lshlrev_b32 v7, 1, v7        ; f
    v_lshl_add_u32 v71, v3, 2, v5  ; rowl = 4g+r
    v_and_b32 v72, 1, v6
    v_lshrrev_b32 v73, 1, v6
    v_lshlrev_b32 v74, 3, v72
    v_lshl_add_u32 v74, v73, 4, v74   ; (c'&1)*8 + (c'>>1)*16""")
    a("s_lshl_b32 s46, s5, 2")
    for q in range(2):
        a(f"""v_add_u32 v75, s46, {2*q}
        """.replace("v_add_u32 v75, s46, %d" % (2 * q), "v_mov_b32 v75, s46\nv_add_u32 v75, %d, v75" % (2 * q)))
        a(f"""v_xor_b32 v75, v75, v7
        v_lshl_add_u32 v75, v75, 4, v74
        v_lshl_add_u32 v{76+q}, v71, 8, v75""")
    for q in range(4):
        a(f"""s_lshl_b32 s46, s5, 3
        s_add_u32 s46, s46, {2*q}
        s_and_b32 s47, s46, 15
        s_and_b32 s46, s46, 16
        v_xor_b32 v75, s47, v7
        v_add_u32 v75, s46, v75
        v_lshl_add_u32 v75, v75, 4, v74
        v_lshl_add_u32 v75, v71, 9, v75
        v_add_u32 v{78+q}, {L_WO}, v75""")
    a(f"""v_and_b32 v75, 1, v3
    v_lshlrev_b32 v75, 1, v75
    v_lshrrev_b32 v82, 1, v5
    v_add_u32 v75, v75, v82
    v_lshlrev_b32 v75, 1, v75
    s_lshl_b32 s46, s5, 1
    v_xor_b32 v75, s46, v75
    v_lshl_add_u32 v75, v75, 4, v74
    v_lshl_add_u32 v75, v71, 7, v75
    v_add_u32 v82, {L_DN}, v75""")
    a(f"""v_lshlrev_b32 v83, 8, v6
    v_lshl_add_u32 v83, v3, 4, v83
    v_add_u32 v83, {L_CL}, v83""")
    a("s_waitcnt vmcnt(36)")
    a("""v_max3_f32 v84, v8, v10, v12
    v_max3_f32 v84, v84, v14, v16
    v_max3_f32 v84, v84, v18, v20
    v_max_f32 v84, v84, v22""")
    xg_reduce(a, "v84", "v85", "v_max_f32")
    for i in range(8):
        a(f"v_sub_f32 v{8+2*i}, v{8+2*i}, v84")
    for i in range(8):
        a(f"v_exp_f32 v{8+2*i}, v{8+2*i}")
    a("s_nop 0\nv_mul_f32 v85, v8, v9")
    for i in range(1, 8):
        a(f"v_fmac_f32 v85, v{8+2*i}, v{9+2*i}")
    xg_reduce(a, "v85", "v86", "v_add_f32")
    a("v_rcp_f32 v85, v85\ns_nop 0")
    for i in range(8):
        a(f"v_mul_f32 v{8+2*i}, v{8+2*i}, v85")
    for i in range(8):
        a(f"s_waitcnt vmcnt({35-i})")
        for k in range(4):
            src = 24 + 4 * i + k
            a(f"v_lshlrev_b32 v86, 16, v{src}\nv_and_b32 v87, 0xffff0000, v{src}")
            if i == 0:
                a(f"v_mul_f32 v{88+2*k}, v8, v86\nv_mul_f32 v{89+2*k}, v8, v87")
            else:
                a(f"v_fmac_f32 v{88+2*k}, v{8+2*i}, v86\nv_fmac_f32 v{89+2*k}, v{8+2*i}, v87")
    for k in range(8):
        xg_reduce(a, f"v{88+k}", "v86", "v_add_f32")
    for k in range(4):
        a(f"v_cvt_pk_bf16_f32 v{88+k}, v{88+2*k}, v{89+2*k}")
    a(f"""s_lshl_b32 s46, s5, 8
    s_add_u32 s46, s46, {L_CL}
    v_lshlrev_b32 v86, 4, v4
    v_add_u32 v86, s46, v86
    ds_write_b128 v86, v[88:91]
    s_waitcnt vmcnt(18) lgkmcnt(0)
    s_barrier""")
    for t in range(4):
        a(f"ds_read_b128 v[{88+4*t}:{91+4*t}], v83 offset:{64*t}")
    for t in range(4):
        for q in range(2):
            b = 112 + 8 * t + 4 * q
            a(f"ds_read_b64_tr_b16 v[{b}:{b+1}], v{76+q} offset:{8192*t}")
            a(f"ds_read_b64_tr_b16 v[{b+2}:{b+3}], v{76+q} offset:{8192*t+4096}")
    for t in range(4):
        for q in range(2):
            b = 112 + 8 * t + 4 * q
            a(f"s_waitcnt lgkmcnt({14 - 4*t - 2*q})")
            c = "0" if t == 0 else f"v[{104+4*q}:{107+4*q}]"
            a(f"v_mfma_f32_16x16x32_bf16 v[{104+4*q}:{107+4*q}], v[{b}:{b+3}], v[{88+4*t}:{91+4*t}], {c}")
    a(f"""v_lshlrev_b32 v86, 8, v4
    v_lshl_add_u32 v86, v3, 4, v86
    s_lshl_b32 s46, s5, 6
    s_add_u32 s46, s46, {L_CT}
    v_add_u32 v86, s46, v86
    v_cmp_gt_u32 vcc, 4, v4
    s_nop 4
    v_cvt_pk_bf16_f32 v104, v104, v105
    v_cvt_pk_bf16_f32 v105, v106, v107
    v_cvt_pk_bf16_f32 v106, v108, v109
    v_cvt_pk_bf16_f32 v107, v110, v111
    s_and_saveexec_b64 s[48:49], vcc
    ds_write_b128 v86, v[104:107]
    s_mov_b64 exec, s[48:49]
    s_waitcnt vmcnt(0) lgkmcnt(0)
    s_barrier""")
    a(f"v_add_u32 v83, {L_CT-L_CL}, v83")
    for t in range(4):
        a(f"ds_read_b128 v[{88+4*t}:{91+4*t}], v83 offset:{64*t}")
    for t in range(4):
        for q in range(4):
            b = 112 + 16 * t + 4 * q
            a(f"ds_read_b64_tr_b16 v[{b}:{b+1}], v{78+q} offset:{16384*t}")
            a(f"ds_read_b64_tr_b16 v[{b+2}:{b+3}], v{78+q} offset:{16384*t+8192}")
            if t == 1 and q == 3 or t == 3 and q == 3:
                pass
        a("s_waitcnt lgkmcnt(0)") if t == 0 else None
    for t in range(2):
        b = 176 + 4 * t
        a(f"ds_read_b64_tr_b16 v[{b}:{b+1}], v82 offset:{4096*t}")
        a(f"ds_read_b64_tr_b16 v[{b+2}:{b+3}], v82 offset:{4096*t+2048}")
    a("s_waitcnt lgkmcnt(0)")
    for t in range(4):
        for q in range(4):
            b = 112 + 16 * t + 4 * q
            c = "0" if t == 0 else f"v[{24+4*q}:{27+4*q}]"
            a(f"v_mfma_f32_16x16x32_bf16 v[{24+4*q}:{27+4*q}], v[{b}:{b+3}], v[{88+4*t}:{91+4*t}], {c}")
    for t in range(2):
        c = "0" if t == 0 else "v[40:43]"
        a(f"v_mfma_f32_16x16x32_bf16 v[40:43], v[{176+4*t}:{179+4*t}], v[{56+4*t}:{59+4*t}], {c}")
    a(f"""s_lshl_b32 s46, s7, 3
    s_lshl_b32 s47, s5, 1
    s_add_u32 s46, s46, s47
    s_mul_i32 s46, s46, {SP_ROWS*128}
    s_lshl_b32 s47, s3, 2
    s_add_u32 s47, s47, s6
    s_lshl_b32 s47, s47, 7
    s_add_u32 s46, s46, s47
    s_add_u32 s46, s46, {WS_SP}
    s_add_u32 s47, s46, {SP_ROWS*128}
    s_mov_b32 s50, {16*SP_ROWS*128}
    v_mul_lo_u32 v86, v4, s50
    v_lshl_add_u32 v86, v3, 4, v86""")
    a(f"""s_lshl_b32 s51, s44, 1
    s_lshr_b32 s52, s5, 1
    s_add_u32 s51, s51, s52
    s_mul_i32 s51, s51, {SP_ROWS*128}
    s_add_u32 s52, s45, 128
    s_lshl_b32 s52, s52, 7
    s_add_u32 s51, s51, s52
    s_and_b32 s52, s5, 1
    s_lshl_b32 s52, s52, 6
    s_add_u32 s51, s51, s52
    s_add_u32 s51, s51, {WS_SP}
    v_cmp_gt_u32 vcc, 4, v4
    s_and_saveexec_b64 s[48:49], vcc
    s_nop 4
    buffer_store_dwordx4 v[24:27], v86, s[36:39], s46 offen
    buffer_store_dwordx4 v[28:31], v86, s[36:39], s46 offen offset:64
    buffer_store_dwordx4 v[32:35], v86, s[36:39], s47 offen
    buffer_store_dwordx4 v[36:39], v86, s[36:39], s47 offen offset:64
    s_cmp_ge_u32 s2, 224
    s_cbranch_scc1 K3_END
    buffer_store_dwordx4 v[40:43], v86, s[36:39], s51 offen""")
    a.label("K3_END")
    a("s_endpgm")
    return a.text(), name, 256, lds, 192


def k4():
    a = A()
    name = NAME + "_kernel"
    header(a, name)
    L_R = 0
    lds = 1024
    a("""s_load_dwordx2 s[8:9], s[0:1], 0
    s_load_dwordx2 s[12:13], s[0:1], 80
    s_load_dwordx2 s[10:11], s[0:1], 96
    s_cmp_ge_u32 s2, 64
    s_cbranch_scc1 K4_END
    v_and_b32 v1, 63, v0
    v_lshrrev_b32 v2, 6, v0
    v_lshrrev_b32 v3, 3, v0
    v_readfirstlane_b32 s5, v2
    v_and_b32 v4, 7, v0            ; chunk
    s_waitcnt lgkmcnt(0)""")
    srd(a, 20, 8, 9, 4096)
    srd(a, 24, 12, 13, 4096)
    srd(a, 36, 10, 11, WS_BYTES)
    a(f"""s_mul_i32 s6, s2, {SP_ROWS*128}
    s_add_u32 s6, s6, {WS_SP}
    v_lshlrev_b32 v5, 4, v0
    s_add_u32 s7, s6, 8192
    buffer_load_dwordx4 v[8:11], v5, s[36:39], s6 offen
    s_add_u32 s3, s6, 4096
    buffer_load_dwordx4 v[12:15], v5, s[36:39], s3 offen
    buffer_load_dwordx4 v[16:19], v5, s[36:39], s7 offen
    s_add_u32 s3, s7, 4096
    buffer_load_dwordx4 v[20:23], v5, s[36:39], s3 offen
    s_add_u32 s3, s6, 16384
    v_mov_b32 v24, 0
    v_mov_b32 v25, 0
    v_mov_b32 v26, 0
    v_mov_b32 v27, 0
    v_cmp_gt_u32 vcc, 28, v3
    s_and_saveexec_b64 s[48:49], vcc
    buffer_load_dwordx4 v[24:27], v5, s[36:39], s3 offen
    s_mov_b64 exec, s[48:49]
    s_lshl_b32 s3, s2, 6
    v_lshlrev_b32 v6, 1, v0
    buffer_load_ushort v28, v6, s[20:23], s3 offen
    s_waitcnt vmcnt(2)""")
    for i in range(4):
        a(f"v_add_f32 v{8+i}, v{8+i}, v{12+i}\nv_add_f32 v{16+i}, v{16+i}, v{20+i}\nv_add_f32 v{8+i}, v{8+i}, v{16+i}")
    a("s_waitcnt vmcnt(1)")
    for r in list(range(8, 12)) + list(range(24, 28)):
        a(f"s_nop 1\nv_add_f32_dpp v{r}, v{r}, v{r} row_ror:8 row_mask:0xf bank_mask:0xf")
        xg_reduce(a, f"v{r}", "v29", "v_add_f32")
    a(f"""s_lshl_b32 s6, s5, 8
    v_lshlrev_b32 v30, 4, v4
    v_add_u32 v30, s6, v30
    v_cmp_gt_u32 vcc, 8, v1
    s_and_saveexec_b64 s[48:49], vcc
    ds_write_b128 v30, v[8:11]
    ds_write_b128 v30, v[24:27] offset:128
    s_mov_b64 exec, s[48:49]
    s_waitcnt lgkmcnt(0)
    s_barrier
    v_cmp_gt_u32 vcc, 32, v0
    s_and_saveexec_b64 s[48:49], vcc
    s_cbranch_execz K4_END
    v_lshlrev_b32 v30, 2, v0""")
    for w in range(4):
        a(f"ds_read_b32 v{8+w}, v30 offset:{256*w}\nds_read_b32 v{12+w}, v30 offset:{256*w+128}")
    a(f"""s_waitcnt lgkmcnt(0)
    v_add_f32 v8, v8, v9
    v_add_f32 v10, v10, v11
    v_add_f32 v8, v8, v10           ; s
    v_add_f32 v12, v12, v13
    v_add_f32 v14, v14, v15
    v_add_f32 v12, v12, v14         ; ffn
    v_mul_f32 v13, {f2u(-LOG2E):#x}, v12
    v_exp_f32 v13, v13
    s_nop 0
    v_add_f32 v13, 1.0, v13
    v_rcp_f32 v13, v13
    s_nop 0
    v_mul_f32 v12, v12, v13         ; silu(ffn)
    s_waitcnt vmcnt(0)
    v_lshlrev_b32 v28, 16, v28
    v_fmac_f32 v28, v8, v12
    v_cvt_pk_bf16_f32 v28, v28, v28
    buffer_store_short v28, v6, s[24:27], s3 offen""")
    a.label("K4_END")
    a("s_endpgm")
    return a.text(), name, 64, lds, 32


def main():
    ref = open(f"cdna_kernels/{NAME}.s.ref").read()
    head = []
    for line in ref.split("\n"):
        if line.startswith("; @launch") or line.startswith("; Override") or line.startswith("; grid="):
            continue
        if line.startswith(";"):
            head.append(line)
        else:
            break
    ks = [k1(), k2(), k3(), k4()]
    out = "\n".join(head) + "\n"
    for txt, name, grid, lds, vg in ks:
        out += f"; @launch kernel={name} grid=({grid},1,1) block=(256,1,1) lds={lds}\n"
    out += '.amdgcn_target "amdgcn-amd-amdhsa--gfx950"\n.text\n'
    for txt, name, grid, lds, vg in ks:
        out += txt
    out += '.section .rodata,"a"\n'
    for txt, name, grid, lds, vg in ks:
        out += kd(name, vg)
    dst = sys.argv[1] if len(sys.argv) > 1 else f"cdna_kernels/{NAME}.s"
    open(dst, "w").write(out)
    print("wrote", dst, len(out))


if __name__ == "__main__":
    main()
```

```python
import sys
import os
import struct

NAME = "recurrent_scan__compressed_kv_cla__swiglu_ffn__decode"

WS_QL = 0x000000
WS_GU = 0x040000
WS_STATS = 0x090000
WS_SP = 0x100000
WS_PART = 0x400000
WS_TS = 0x8000000
WS_BYTES = 0x10000000
SP_ROWS = 156

QSCALE = (128 ** -0.5) * 1.4426950408889634
LOG2E = 1.4426950408889634
TS = bool(os.environ.get("TS"))
SPIN_MAX = 40000
P2A = int(os.environ.get("P2A", "8"))


def f2u(x):
    return struct.unpack("<I", struct.pack("<f", x))[0]


class A:
    def __init__(self):
        self.l = []
        self.vm = []

    def __call__(self, s):
        for line in s.strip("\n").split("\n"):
            line = line.strip()
            if line:
                self.l.append("    " + line)

    def label(self, s):
        self.l.append(s + ":")

    def raw(self, s):
        self.l.append(s)

    def text(self):
        return "\n".join(self.l) + "\n"

    def vmop(self, s, tag):
        self(s)
        self.vm.append(tag)

    def wait_vm(self, *tags, extra=""):
        last = max(i for i, t in enumerate(self.vm) if t in tags)
        n = len(self.vm) - 1 - last
        assert n <= 63, n
        self(f"s_waitcnt vmcnt({n}) {extra}")


def srd(a, d, lo, nbytes):
    a(f"""s_mov_b32 s{d}, s{lo}
    s_mov_b32 s{d+1}, s{lo+1}
    s_mov_b32 s{d+2}, {nbytes}
    s_mov_b32 s{d+3}, 0x00020000""")


def ts(a, p):
    if TS:
        a(f"s_memrealtime s[{64+2*p}:{65+2*p}]")


def xg_reduce(a, v, t, op):
    a(f"""v_mov_b32 {t}, {v}
    s_nop 1
    v_permlane16_swap_b32 {v}, {t}
    s_nop 1
    {op} {v}, {v}, {t}
    v_mov_b32 {t}, {v}
    s_nop 1
    v_permlane32_swap_b32 {v}, {t}
    s_nop 1
    {op} {v}, {v}, {t}""")


def wave_sum(a, v, t):
    for r in (8, 4, 2, 1):
        a(f"s_nop 1\nv_add_f32_dpp {v}, {v}, {v} row_ror:{r} row_mask:0xf bank_mask:0xf")
    xg_reduce(a, v, t, "v_add_f32")


sX, sCKV, sWQ, sWUK, sWUV, sWO, sFF, sWS, sDN, sOUT, sDBG = 8, 12, 16, 20, 24, 28, 32, 36, 40, 44, 48


def R(d):
    return f"s[{d}:{d+3}]"


def fused():
    a = A()
    name = NAME + "_kernel"
    a.raw(f".globl {name}")
    a.raw(".p2align 8")
    a.raw(f".type {name},@function")
    a.label(name)
    L_QL = 131072
    L_P = L_QL + 16384
    L_Q = L_P
    L_X = L_P + 4096
    L_MX, L_LS, L_CL, L_CT, L_H1 = L_X, L_X + 256, L_X + 1024, L_X + 2048, L_X + 3072
    L_DN = L_X + 4096
    lds = L_DN + 8192
    WQ_OFF, FF_OFF = 12288, 28672
    L_UV, L_WO = 0, 32768
    if TS:
        a("s_getpc_b64 s[100:101]")
    a("""s_load_dwordx16 s[64:79], s[0:1], 0
    s_load_dwordx8 s[80:87], s[0:1], 64
    s_load_dwordx2 s[88:89], s[0:1], 96
    s_cmp_ge_u32 s2, 256
    s_cbranch_scc1 K_END
    v_and_b32 v1, 63, v0
    v_lshrrev_b32 v2, 6, v0
    s_and_b32 s3, s2, 7
    v_readfirstlane_b32 s5, v2
    s_lshr_b32 s6, s2, 3
    s_and_b32 s7, s6, 3
    s_lshl_b32 s7, s7, 3
    s_or_b32 s3, s3, s7            ; h
    s_lshr_b32 s4, s2, 5           ; j
    s_and_b32 s52, s4, 1           ; dh
    s_lshr_b32 s53, s4, 1          ; cs
    s_min_u32 s6, s2, 223
    s_and_b32 s54, s6, 3           ; ks
    s_lshr_b32 s7, s6, 2           ; cb 0..55
    s_cmp_ge_u32 s7, 28
    s_cselect_b32 s56, 1, 0        ; mat
    s_mul_i32 s55, s56, 28
    s_sub_u32 s55, s7, s55         ; cbk
    s_lshr_b32 s59, s6, 3          ; fs 0..27
    s_and_b32 s60, s6, 7           ; ms 0..7
    s_lshr_b32 s6, s2, 3
    s_and_b32 s58, s6, 1           ; hg
    s_lshr_b32 s6, s2, 4
    s_lshl_b32 s6, s6, 3
    s_and_b32 s57, s2, 7
    s_or_b32 s57, s57, s6          ; T 0..127
    v_lshrrev_b32 v3, 4, v1        ; g
    v_and_b32 v4, 15, v1           ; i16
    v_bfe_u32 v5, v1, 2, 2         ; r
    v_and_b32 v6, 3, v1            ; c'
    v_lshlrev_b32 v31, 4, v1       ; l*16
    s_waitcnt lgkmcnt(0)""")
    srd(a, sX, 64, 4096)
    srd(a, sWQ, 68, 4194304)
    a("""s_cmp_eq_u32 s56, 1
    s_cselect_b32 s78, s80, s78
    s_cselect_b32 s79, s81, s79""")
    srd(a, sFF, 78, 1835008)
    srd(a, sWUK, 70, 4194304)
    srd(a, sWS, 88, WS_BYTES)
    srd(a, sDN, 82, 1835008)
    srd(a, sCKV, 66, 16777216)
    srd(a, sWUV, 72, 4194304)
    srd(a, sWO, 74, 4194304)
    srd(a, sOUT, 84, 4096)
    srd(a, sDBG, 86, 256)
    ts(a, 0)
    a("s_lshl_b32 s6, s5, 10")
    a.vmop(f"buffer_load_dwordx4 v[8:11], v31, {R(sX)}, s6 offen", "x")
    a(f"""v_lshrrev_b32 v7, 3, v1        ; l>>3
    v_and_b32 v2, 7, v1
    v_lshlrev_b32 v28, 1, v3
    v_xor_b32 v2, v2, v28
    v_lshlrev_b32 v2, 4, v2
    v_lshl_add_u32 v29, v7, 13, v2 ; w_q voff
    s_movk_i32 s6, 3584
    v_mul_lo_u32 v28, v7, s6
    v_add_u32 v28, v28, v2
    v_lshl_add_u32 v30, v7, 10, v2
    s_lshl_b32 s6, s5, 20
    s_lshl_b32 s7, s3, 8
    s_add_u32 s6, s6, s7
    s_lshl_b32 s7, s52, 7
    s_add_u32 s6, s6, s7
    s_lshl_b32 s7, s5, 15
    s_add_u32 m0, s7, {WQ_OFF}""")
    for i in range(16):
        a.vmop(f"s_nop 0\nbuffer_load_dwordx4 v29, {R(sWQ)}, s6 offen lds", "wq")
        if i < 15:
            a(f"s_add_u32 s6, s6, {8*8192}\ns_add_u32 m0, m0, 1024")
    a(f"""s_lshl_b32 s6, s54, 7
    s_lshl_b32 s7, s5, 5
    s_add_u32 s6, s6, s7
    s_mul_i32 s6, s6, 3584
    s_lshl_b32 s7, s55, 7
    s_add_u32 s6, s6, s7
    s_lshl_b32 s7, s5, 15
    s_add_u32 m0, s7, {FF_OFF}""")
    for i in range(4):
        a.vmop(f"s_nop 0\nbuffer_load_dwordx4 v28, {R(sFF)}, s6 offen lds", "ff")
        if i < 3:
            a(f"s_add_u32 s6, s6, {8*3584}\ns_add_u32 m0, m0, 1024")
    a(f"""v_lshrrev_b32 v7, 2, v4
    v_and_b32 v2, 3, v4
    v_lshl_add_u32 v7, v7, 3, v2
    v_lshlrev_b32 v7, 13, v7
    v_lshl_add_u32 v7, v3, 4, v7
    s_lshl_b32 s6, s53, 7
    s_lshl_b32 s7, s5, 5
    s_add_u32 s6, s6, s7
    s_lshl_b32 s6, s6, 13
    s_lshl_b32 s7, s3, 8
    s_add_u32 s6, s6, s7
    s_lshl_b32 s7, s52, 7
    s_add_u32 s6, s6, s7
    s_add_u32 s7, s6, 32768""")
    for q in range(2):
        for t in range(2):
            b = 12 + 8 * q + 4 * t
            a.vmop(f"buffer_load_dwordx4 v[{b}:{b+3}], v7, {R(sWUK)}, s{6+q} offen offset:{64*t}", "wuk")
    a(f"""v_mov_b32 v40, -1
    v_mov_b32 v41, -1
    v_mov_b32 v42, -1
    v_mov_b32 v43, -1
    v_lshlrev_b32 v7, 4, v0        ; tid*16
    s_lshl_b32 s6, s3, 2
    s_and_b32 s7, s4, 3
    s_add_u32 s6, s6, s7           ; h*4+cj
    s_lshl_b32 s6, s6, 15
    s_lshr_b32 s7, s4, 2
    s_lshl_b32 s7, s7, 14
    s_add_u32 s6, s6, s7
    s_add_u32 s6, s6, {WS_PART}""")
    for i in range(4):
        a.vmop(f"buffer_store_dwordx4 v[40:43], v7, {R(sWS)}, s6 offen sc1", "rst")
        if i < 3:
            a("s_add_u32 s6, s6, 4096")
    a(f"""s_mul_i32 s6, s2, 4992
    s_mul_i32 s7, s5, 1248
    s_add_u32 s6, s6, s7
    s_add_u32 s6, s6, {WS_SP}""")
    a.vmop(f"buffer_store_dwordx4 v[40:43], v31, {R(sWS)}, s6 offen sc1", "rst")
    a("""v_cmp_gt_u32 vcc, 14, v1
    s_and_saveexec_b64 s[62:63], vcc""")
    a.vmop(f"buffer_store_dwordx4 v[40:43], v31, {R(sWS)}, s6 offen offset:1024 sc1", "rst")
    a(f"""s_lshl_b32 s6, s3, 10
    s_lshl_b32 s7, s4, 7
    s_add_u32 s6, s6, s7
    s_lshl_b32 s7, s5, 5
    s_add_u32 s6, s6, s7
    s_add_u32 s6, s6, {WS_STATS}
    v_cmp_gt_u32 vcc, 2, v1
    s_and_b64 exec, exec, vcc""")
    a.vmop(f"buffer_store_dwordx4 v[40:43], v31, {R(sWS)}, s6 offen sc1", "rst")
    a("s_mov_b64 exec, s[62:63]")
    a(f"""s_lshl_b32 s6, s59, 6
    s_lshl_b32 s7, s5, 4
    s_add_u32 s6, s6, s7
    s_lshl_b32 s6, s6, 10
    s_lshl_b32 s7, s60, 7
    s_add_u32 s6, s6, s7
    s_lshl_b32 s7, s5, 11
    s_add_u32 m0, s7, {L_DN}""")
    a.vmop(f"s_nop 0\nbuffer_load_dwordx4 v30, {R(sDN)}, s6 offen lds", "dn")
    a("s_add_u32 s6, s6, 8192\ns_add_u32 m0, m0, 1024")
    a.vmop(f"s_nop 0\nbuffer_load_dwordx4 v30, {R(sDN)}, s6 offen lds", "dn")
    for k in range(8):
        a(f"v_xor_b32 v{32+k}, {k << 5}, v31")
    a("""s_lshl_b32 s61, s57, 17
    s_lshl_b32 s7, s5, 15
    s_add_u32 s61, s61, s7
    s_mov_b32 m0, s7""")

    def ckv_dma(k0, k1):
        for i in range(k0, k1):
            if i % 4 == 0 or i == k0:
                a(f"s_lshl_b32 s7, s5, 15\ns_add_u32 m0, s7, {4096*(i//4)}\ns_add_u32 s6, s61, {4096*(i//4)}")
            a.vmop(f"buffer_load_dwordx4 v{32 + (i & 7)}, {R(sCKV)}, s6 offen offset:{1024*(i&3)} lds", "ckv")
    ckv_dma(0, 12)
    ts(a, 1)
    a(f"""v_lshl_add_u32 v2, v3, 2, v5   ; rowl
    v_and_b32 v7, 1, v6
    v_lshrrev_b32 v44, 1, v6
    v_lshlrev_b32 v7, 3, v7
    v_lshl_add_u32 v56, v44, 4, v7 ; cc
    v_and_b32 v7, 1, v3
    v_lshlrev_b32 v7, 1, v7
    v_lshrrev_b32 v44, 1, v5
    v_add_u32 v7, v7, v44
    v_lshlrev_b32 v7, 1, v7        ; f3
    s_lshl_b32 s6, s5, 1
    v_xor_b32 v7, s6, v7
    v_lshl_add_u32 v7, v7, 4, v56
    v_lshl_add_u32 v44, v2, 7, v7
    v_add_u32 v47, 0x10000, v44
    v_add_u32 v57, {L_DN}, v44
    v_lshlrev_b32 v45, 10, v6
    v_lshl_add_u32 v45, v3, 4, v45
    v_add_u32 v45, {L_X}, v45
    v_lshrrev_b32 v46, 2, v1
    v_lshlrev_b32 v46, 6, v46
    v_and_b32 v7, 1, v6
    v_lshl_add_u32 v46, v7, 5, v46
    v_lshrrev_b32 v7, 1, v6
    v_lshl_add_u32 v46, v7, 3, v46
    s_lshl_b32 s6, s5, 10
    s_add_u32 s6, s6, {L_X}
    v_add_u32 v46, s6, v46""")
    a.wait_vm("x")
    ts(a, 2)
    for i in range(4):
        a(f"v_lshlrev_b32 v{48+2*i}, 16, v{8+i}\nv_and_b32 v{49+2*i}, 0xffff0000, v{8+i}")
    a("""v_add_f32 v58, v48, v49
    v_add_f32 v59, v50, v51
    v_add_f32 v60, v52, v53
    v_add_f32 v61, v54, v55
    v_add_f32 v58, v58, v59
    v_add_f32 v60, v60, v61
    v_add_f32 v58, v58, v60""")
    wave_sum(a, "v58", "v59")
    a(f"v_mul_f32 v58, {f2u(1.0/512):#x}, v58")
    for i in range(8):
        a(f"v_sub_f32 v{48+i}, v{48+i}, v58")
    a("v_mul_f32 v59, v48, v48")
    for i in range(1, 8):
        a(f"v_fmac_f32 v59, v{48+i}, v{48+i}")
    wave_sum(a, "v59", "v60")
    a(f"""v_mov_b32 v60, {f2u(1e-5):#x}
    v_fmac_f32 v60, {f2u(1.0/512):#x}, v59
    v_rsq_f32 v60, v60
    s_nop 0""")
    for i in range(8):
        a(f"v_mul_f32 v{48+i}, v{48+i}, v60")
    for i in range(4):
        a(f"v_cvt_pk_bf16_f32 v{60+i}, v{48+2*i}, v{49+2*i}")
    a("""ds_write_b64 v46, v[60:61]
    ds_write_b64 v46, v[62:63] offset:16""")
    a.wait_vm("wq", "ff", extra="lgkmcnt(0)")
    a("s_barrier")
    ts(a, 3)
    a("s_lshl_b32 s6, s54, 8\nv_add_u32 v58, s6, v45")
    for t in range(4):
        a(f"ds_read_b128 v[{200+4*t}:{203+4*t}], v58 offset:{64*t}")
        rb = "v44" if t < 2 else "v47"
        off = FF_OFF + 32768 * (t & 1)
        a(f"ds_read_b64_tr_b16 v[{216+4*t}:{217+4*t}], {rb} offset:{off}")
        a(f"ds_read_b64_tr_b16 v[{218+4*t}:{219+4*t}], {rb} offset:{off+2048}")

    def q_reads(t):
        a(f"ds_read_b128 v[{64+4*t}:{67+4*t}], v45 offset:{64*t}")
        rb = "v44" if t < 8 else "v47"
        off = WQ_OFF + 32768 * ((t >> 2) & 1) + 4096 * (t & 3)
        a(f"ds_read_b64_tr_b16 v[{128+4*t}:{129+4*t}], {rb} offset:{off}")
        a(f"ds_read_b64_tr_b16 v[{130+4*t}:{131+4*t}], {rb} offset:{off+2048}")
    q_reads(0)
    for t in range(4):
        a(f"s_waitcnt lgkmcnt({3*(3-t)+3})")
        c = "0" if t == 0 else "v[232:235]"
        a(f"v_mfma_f32_16x16x32_bf16 v[232:235], v[{216+4*t}:{219+4*t}], v[{200+4*t}:{203+4*t}], {c}")
    for t in range(1, 5):
        q_reads(t)
    for t in range(16):
        ahead = min(4, 15 - t)
        a(f"s_waitcnt lgkmcnt({3*ahead})")
        acc = 192 + 4 * (t & 1)
        c = "0" if t < 2 else f"v[{acc}:{acc+3}]"
        a(f"v_mfma_f32_16x16x32_bf16 v[{acc}:{acc+3}], v[{128+4*t}:{131+4*t}], v[{64+4*t}:{67+4*t}], {c}")
        if t + 5 < 16:
            q_reads(t + 5)
    a(f"""s_lshl_b32 s6, s54, 1
    s_add_u32 s6, s6, s56
    s_mul_i32 s6, s6, {4*7168}
    s_lshl_b32 s7, s55, 8
    s_add_u32 s6, s6, s7
    s_lshl_b32 s7, s5, 6
    s_add_u32 s6, s6, s7
    s_add_u32 s6, s6, {WS_GU}
    s_movk_i32 s7, 7168
    v_mul_lo_u32 v58, v4, s7
    v_lshl_add_u32 v58, v3, 4, v58
    v_lshlrev_b32 v59, 7, v4
    v_lshl_add_u32 v59, v3, 3, v59
    s_lshl_b32 s7, s5, 5
    s_add_u32 s7, s7, {L_Q}
    v_add_u32 v59, s7, v59
    v_cmp_gt_u32 vcc, 4, v4
    s_and_saveexec_b64 s[62:63], vcc""")
    a.vmop(f"buffer_store_dwordx4 v[232:235], v58, {R(sWS)}, s6 offen sc1", "gu")
    a(f"""s_nop 4
    v_add_f32 v192, v192, v196
    v_add_f32 v193, v193, v197
    v_add_f32 v194, v194, v198
    v_add_f32 v195, v195, v199
    v_cvt_pk_bf16_f32 v192, v192, v193
    v_cvt_pk_bf16_f32 v193, v194, v195
    ds_write_b64 v59, v[192:193]
    s_mov_b64 exec, s[62:63]
    v_lshlrev_b32 v59, 7, v6
    v_lshl_add_u32 v59, v3, 4, v59
    v_add_u32 v59, {L_Q}, v59
    s_waitcnt lgkmcnt(0)
    s_barrier""")
    ts(a, 4)
    a("""ds_read_b128 v[64:67], v59
    ds_read_b128 v[68:71], v59 offset:64""")
    a(f"""s_lshl_b32 s6, s52, 17
    s_lshr_b32 s7, s3, 4
    s_lshl_b32 s7, s7, 14
    s_add_u32 s6, s6, s7
    s_lshl_b32 s7, s53, 2
    s_add_u32 s7, s7, s5
    s_lshl_b32 s7, s7, 10
    s_add_u32 s6, s6, s7
    s_and_b32 s7, s3, 15
    s_lshl_b32 s7, s7, 4
    s_add_u32 s6, s6, s7
    s_add_u32 s6, s6, {WS_QL}
    v_lshlrev_b32 v58, 15, v4
    v_lshl_add_u32 v58, v3, 8, v58
    s_mov_b32 s7, {f2u(QSCALE):#x}""")
    a.wait_vm("wuk", extra="lgkmcnt(0)")
    for t in range(2):
        for q in range(2):
            b = 12 + 8 * q + 4 * t
            c = "0" if t == 0 else f"v[{72+4*q}:{75+4*q}]"
            a(f"v_mfma_f32_16x16x32_bf16 v[{72+4*q}:{75+4*q}], v[{b}:{b+3}], v[{64+4*t}:{67+4*t}], {c}")
    a("""v_cmp_gt_u32 vcc, 4, v4
    s_and_saveexec_b64 s[62:63], vcc
    s_nop 7""")
    for i in range(8):
        a(f"v_mul_f32 v{72+i}, s7, v{72+i}")
    for i in range(4):
        a(f"v_cvt_pk_bf16_f32 v{72+i}, v{72+2*i}, v{73+2*i}")
    a.vmop(f"buffer_store_dwordx4 v[72:75], v58, {R(sWS)}, s6 offen sc1", "ql")
    a("s_mov_b64 exec, s[62:63]")
    ts(a, 5)
    ckv_dma(12, 12 + P2A)
    a.wait_vm("ql", "gu", "rst")
    a(f"""s_barrier
    s_cmp_lg_u32 s5, 0
    s_cbranch_scc1 NOSIG1
    v_mov_b32 v58, s2
    v_mov_b32 v59, 1
    v_cmp_eq_u32 vcc, 0, v1
    s_and_saveexec_b64 s[62:63], vcc
    buffer_store_byte v59, v58, {R(sDBG)}, 0 offen sc1
    s_mov_b64 exec, s[62:63]""")
    a.label("NOSIG1")
    ts(a, 6)
    ckv_dma(12 + P2A, 32)
    a("""v_and_b32 v7, 7, v4
    v_lshlrev_b32 v7, 1, v7
    s_lshl_b32 s6, s5, 5
    v_add_u32 v58, s6, v4
    v_lshlrev_b32 v58, 10, v58""")
    for tq in range(4):
        a(f"v_add_u32 v59, {4*tq}, v3\nv_xor_b32 v59, v59, v7\nv_lshl_add_u32 v{24+tq}, v59, 4, v58")
    a(f"v_add_u32 v28, {L_QL}, v31")
    a("""v_and_b32 v7, 1, v3
    v_lshl_add_u32 v7, v7, 2, v5
    v_lshlrev_b32 v7, 1, v7
    v_lshl_add_u32 v58, v2, 10, v56
    s_lshl_b32 s6, s5, 8
    v_add_u32 v58, s6, v58""")
    for n in range(8):
        a(f"v_xor_b32 v59, {2*n}, v7\nv_lshl_add_u32 v{32+n}, v59, 4, v58\nv_add_u32 v{8+n}, 0x10000, v{32+n}")
    a(f"""s_cmp_lg_u32 s5, 0
    s_cbranch_scc1 E1_DONE
    v_lshlrev_b32 v58, 2, v1
    s_mov_b32 s7, 0x01010101
    s_mov_b32 s6, {SPIN_MAX}""")
    a.label("E1_POLL")
    a(f"""buffer_load_dword v59, v58, {R(sDBG)}, 0 offen sc1
    s_waitcnt vmcnt(0)
    v_cmp_ne_u32 vcc, s7, v59
    s_cbranch_vccz E1_DONE
    s_sub_u32 s6, s6, 1
    s_cmp_eq_u32 s6, 0
    s_cbranch_scc1 E1_DONE
    s_sleep 1
    s_branch E1_POLL""")
    a.label("E1_DONE")
    a("s_barrier")
    ts(a, 7)
    a.vm = ["ckv"]
    a(f"""s_lshr_b32 s6, s57, 5          ; b
    s_lshl_b32 s6, s6, 1
    s_add_u32 s6, s6, s58
    s_lshl_b32 s6, s6, 14
    s_lshl_b32 s7, s5, 12
    s_add_u32 s6, s6, s7
    s_add_u32 s6, s6, {WS_QL}
    s_add_u32 s7, s6, 131072""")
    for dh in range(2):
        for tt in range(4):
            b = 128 + 16 * dh + 4 * tt
            a.vmop(f"buffer_load_dwordx4 v[{b}:{b+3}], v31, {R(sWS)}, s{6+dh} offen offset:{1024*tt} sc1", "qlr")
    a(f"""s_mul_i32 s6, s5, 7168
    s_lshl_b32 s7, s59, 8
    s_add_u32 s6, s6, s7
    s_add_u32 s6, s6, {WS_GU}
    v_lshlrev_b32 v58, 2, v1""")
    for km in range(8):
        a.vmop(f"buffer_load_dword v{160+km}, v58, {R(sWS)}, s6 offen sc1", "gur")
        if km < 7:
            a(f"s_add_u32 s6, s6, {4*7168}")
    a("""v_lshlrev_b32 v58, 1, v3
    v_xor_b32 v58, v58, v4
    v_lshlrev_b32 v58, 4, v58
    v_lshl_add_u32 v58, v3, 13, v58
    v_xor_b32 v59, 0x80, v58
    s_and_b32 s6, s4, 3
    s_lshl_b32 s6, s6, 7
    s_lshl_b32 s7, s5, 5
    s_add_u32 s6, s6, s7
    s_lshl_b32 s6, s6, 13
    s_lshl_b32 s7, s3, 8
    s_add_u32 s6, s6, s7""")
    for i in range(8):
        a.vmop(f"buffer_load_dwordx4 a[{4*i}:{4*i+3}], v{58+(i&1)}, {R(sWUV)}, s6 offen", "wuv")
        if i < 7:
            a(f"s_add_u32 s6, s6, {4*8192}")
    a("""v_lshrrev_b32 v58, 5, v1
    v_and_b32 v59, 31, v1""")
    for q in range(4):
        a(f"""v_add_u32 v60, {2*q}, v58
        v_lshlrev_b32 v60, 1, v60
        v_xor_b32 v60, v60, v59
        v_lshlrev_b32 v60, 4, v60
        v_lshl_add_u32 v{168+q}, v58, 10, v60""")
    a("""s_lshl_b32 s6, s3, 17
    s_lshl_b32 s7, s5, 15
    s_add_u32 s6, s6, s7
    s_lshr_b32 s7, s4, 2
    s_lshl_b32 s7, s7, 9
    s_add_u32 s6, s6, s7""")
    for i in range(16):
        a.vmop(f"buffer_load_dwordx4 a[{32+4*i}:{35+4*i}], v{168+(i&3)}, {R(sWO)}, s6 offen", "wo")
        if i < 15:
            a("s_add_u32 s6, s6, 2048")
    a(f"""s_lshl_b32 s6, s5, 12
    v_add_u32 v58, s6, v28""")
    a.wait_vm("qlr")
    for tt in range(4):
        for k in range(4):
            x, y, o = 128 + 4 * tt + k, 144 + 4 * tt + k, 64 + 4 * tt + k
            a(f"""v_lshlrev_b32 v59, 16, v{x}
            v_lshlrev_b32 v60, 16, v{y}
            v_and_b32 v61, 0xffff0000, v{x}
            v_and_b32 v62, 0xffff0000, v{y}
            v_add_f32 v59, v59, v60
            v_add_f32 v61, v61, v62
            v_cvt_pk_bf16_f32 v{o}, v59, v61""")
        a(f"ds_write_b128 v58, v[{64+4*tt}:{67+4*tt}] offset:{1024*tt}")
    a("s_waitcnt lgkmcnt(0)\ns_barrier")
    ts(a, 8)
    for t in range(16):
        a(f"ds_read_b128 v[{64+4*t}:{67+4*t}], v28 offset:{1024*t}")
    a.wait_vm("gur")
    a(f"""v_add_f32 v160, v160, v162
    v_add_f32 v164, v164, v166
    v_add_f32 v161, v161, v163
    v_add_f32 v165, v165, v167
    v_add_f32 v160, v160, v164
    v_add_f32 v161, v161, v165
    v_mul_f32 v162, {f2u(-LOG2E):#x}, v160
    v_exp_f32 v162, v162
    v_and_b32 v163, 32, v1
    v_lshl_add_u32 v163, v5, 3, v163
    v_add_f32 v162, 1.0, v162
    v_rcp_f32 v162, v162
    v_bfe_u32 v164, v1, 4, 1
    v_lshl_add_u32 v163, v164, 2, v163
    v_add_u32 v163, v163, v6
    v_mul_f32 v160, v160, v162
    v_mul_f32 v160, v160, v161
    v_cvt_pk_bf16_f32 v160, v160, v160
    v_lshlrev_b32 v163, 1, v163
    s_lshl_b32 s6, s5, 7
    s_add_u32 s6, s6, {L_H1}
    v_add_u32 v163, s6, v163
    ds_write_b16 v163, v160""")
    for kb in range(2):
        for t in range(16):
            a(f"ds_read_b128 v[{128+4*t}:{131+4*t}], v{24+(t&3)} offset:{(t>>2)*256+kb*16384}")
        for t in range(16):
            a(f"s_waitcnt lgkmcnt({15-t})")
            c = "0" if t == 0 else f"v[{48+4*kb}:{51+4*kb}]"
            a(f"v_mfma_f32_16x16x32_bf16 v[{48+4*kb}:{51+4*kb}], v[{128+4*t}:{131+4*t}], v[{64+4*t}:{67+4*t}], {c}")
    ts(a, 9)
    a(f"""v_lshlrev_b32 v58, 4, v4       ; head*16
    s_lshl_b32 s6, s5, 2
    s_add_u32 s6, s6, {L_MX}
    v_add_u32 v59, s6, v58         ; MX[head][w]
    v_add_u32 v58, {L_MX}, v58
    s_nop 4
    v_max3_f32 v60, v48, v49, v50
    v_max3_f32 v60, v60, v51, v52
    v_max3_f32 v60, v60, v53, v54
    v_max_f32 v60, v60, v55""")
    xg_reduce(a, "v60", "v61", "v_max_f32")
    a(f"""ds_write_b32 v59, v60
    s_waitcnt lgkmcnt(0)
    s_barrier
    ds_read_b128 v[128:131], v58
    s_waitcnt lgkmcnt(0)
    v_max3_f32 v60, v128, v129, v130
    v_max_f32 v60, v60, v131        ; m""")
    for i in range(8):
        a(f"v_sub_f32 v{48+i}, v{48+i}, v60")
    for i in range(8):
        a(f"v_exp_f32 v{48+i}, v{48+i}")
    a("""s_nop 0
    v_add_f32 v61, v48, v49
    v_add_f32 v62, v50, v51
    v_add_f32 v63, v52, v53
    v_add_f32 v128, v54, v55
    v_add_f32 v61, v61, v62
    v_add_f32 v63, v63, v128
    v_add_f32 v61, v61, v63""")
    for i in range(4):
        a(f"v_cvt_pk_bf16_f32 v{48+i}, v{48+2*i}, v{49+2*i}")
    a(f"""s_lshl_b32 s6, s5, 10
    s_add_u32 s6, s6, {L_P}
    v_add_u32 v62, s6, v31
    ds_write_b128 v62, v[48:51]""")
    xg_reduce(a, "v61", "v63", "v_add_f32")
    a(f"""ds_write_b32 v59, v61 offset:{L_LS-L_MX}
    v_add_u32 v62, {L_P}, v31
    s_waitcnt lgkmcnt(0)
    s_barrier""")
    for u in range(4):
        a(f"ds_read_b128 v[{64+4*u}:{67+4*u}], v62 offset:{1024*u}")
    a(f"ds_read_b128 v[52:55], v58 offset:{L_LS-L_MX}")
    ts(a, 10)

    def pv_reads(u):
        base = 128 + 32 * (u & 1)
        ab = 32 if u < 2 else 8
        off = (u & 1) * 32768
        for n in range(8):
            a(f"ds_read_b64_tr_b16 v[{base+4*n}:{base+4*n+1}], v{ab+n} offset:{off}")
            a(f"ds_read_b64_tr_b16 v[{base+4*n+2}:{base+4*n+3}], v{ab+n} offset:{off+16384}")
    pv_reads(0)
    for u in range(4):
        if u < 3:
            pv_reads(u + 1)
        base = 128 + 32 * (u & 1)
        for n in range(8):
            rem = (16 if u < 3 else 0) + 14 - 2 * n
            a(f"s_waitcnt lgkmcnt({min(rem, 15)})")
            c = "0" if u == 0 else f"v[{80+4*n}:{83+4*n}]"
            a(f"v_mfma_f32_16x16x32_bf16 v[{80+4*n}:{83+4*n}], v[{base+4*n}:{base+4*n+3}], v[{64+4*u}:{67+4*u}], {c}")
    ts(a, 11)
    a("s_barrier")
    a(f"""v_add_f32 v52, v52, v53
    v_add_f32 v54, v54, v55
    v_add_f32 v61, v52, v54         ; L
    s_mov_b32 s61, 0xfffffffe
    s_lshr_b32 s7, s57, 5           ; b
    s_lshl_b32 s6, s58, 6
    s_add_u32 s6, s6, s7            ; (hg*16)*4 + b
    s_lshl_b32 s6, s6, 2
    s_and_b32 s7, s57, 3
    s_add_u32 s6, s6, s7
    s_lshl_b32 s6, s6, 3
    s_bfe_u32 s7, s57, 0x30002      ; (T>>2)&7 = s>>2
    s_add_u32 s6, s6, s7
    s_lshl_b32 s6, s6, 3
    s_add_u32 s6, s6, {WS_STATS}
    v_lshlrev_b32 v58, 10, v4       ; head * 1024
    v_min_u32 v60, s61, v60
    v_min_u32 v61, s61, v61""")
    a(f"""s_lshl_b32 s7, s58, 6
    s_add_u32 s7, s7, s5
    s_lshl_b32 s7, s7, 7
    s_add_u32 s7, s7, s57
    s_lshl_b32 s7, s7, 8
    s_add_u32 s7, s7, {WS_PART}
    v_lshlrev_b32 v59, 17, v4
    v_lshl_add_u32 v59, v3, 4, v59""")
    for np_ in range(4):
        b0 = 80 + 8 * np_
        a(f"""v_cvt_pk_bf16_f32 v{b0}, v{b0}, v{b0+1}
        v_cvt_pk_bf16_f32 v{b0+1}, v{b0+2}, v{b0+3}
        v_cvt_pk_bf16_f32 v{b0+2}, v{b0+4}, v{b0+5}
        v_cvt_pk_bf16_f32 v{b0+3}, v{b0+6}, v{b0+7}
        v_min_u32 v{b0}, s61, v{b0}
        v_min_u32 v{b0+1}, s61, v{b0+1}
        v_min_u32 v{b0+2}, s61, v{b0+2}
        v_min_u32 v{b0+3}, s61, v{b0+3}""")
        a.vmop(f"buffer_store_dwordx4 v[{b0}:{b0+3}], v59, {R(sWS)}, s7 offen offset:{64*np_} sc1", "part")
    a("""s_cmp_lg_u32 s5, 0
    s_cbranch_scc1 NOSTAT
    v_cmp_gt_u32 vcc, 16, v1
    s_and_saveexec_b64 s[62:63], vcc""")
    a(f"buffer_store_dwordx2 v[60:61], v58, {R(sWS)}, s6 offen sc1")
    a("s_mov_b64 exec, s[62:63]")
    a.label("NOSTAT")
    a(f"""s_lshl_b32 s6, s5, 13
    v_add_u32 v58, s6, v31
    s_lshl_b32 s6, s5, 14
    s_add_u32 s6, s6, {L_WO}
    v_add_u32 v59, s6, v31""")
    a.wait_vm("wuv", "wo")
    for i in range(8):
        a(f"ds_write_b128 v58, a[{4*i}:{4*i+3}] offset:{L_UV+1024*i}")
    for i in range(16):
        a(f"ds_write_b128 v59, a[{32+4*i}:{35+4*i}] offset:{1024*i}")
    a(f"""v_lshlrev_b32 v58, 7, v6
    v_lshl_add_u32 v58, v3, 4, v58
    v_add_u32 v58, {L_H1}, v58
    ds_read_b128 v[64:67], v58
    ds_read_b128 v[68:71], v58 offset:64""")
    for t in range(2):
        b = 72 + 4 * t
        a(f"ds_read_b64_tr_b16 v[{b}:{b+1}], v57 offset:{4096*t}")
        a(f"ds_read_b64_tr_b16 v[{b+2}:{b+3}], v57 offset:{4096*t+2048}")
    a(f"""s_lshl_b32 s6, s60, 1
    s_lshr_b32 s7, s5, 1
    s_add_u32 s6, s6, s7
    s_mul_i32 s6, s6, {SP_ROWS*128}
    s_add_u32 s7, s59, 128
    s_lshl_b32 s7, s7, 7
    s_add_u32 s6, s6, s7
    s_and_b32 s7, s5, 1
    s_lshl_b32 s7, s7, 6
    s_add_u32 s6, s6, s7
    s_add_u32 s6, s6, {WS_SP}
    s_mov_b32 s7, {16*SP_ROWS*128}
    v_mul_lo_u32 v63, v4, s7
    v_lshl_add_u32 v63, v3, 4, v63
    s_waitcnt lgkmcnt(0)
    v_mfma_f32_16x16x32_bf16 v[80:83], v[72:75], v[64:67], 0
    v_mfma_f32_16x16x32_bf16 v[80:83], v[76:79], v[68:71], v[80:83]
    v_cmp_gt_u32 vcc, 4, v4
    s_and_saveexec_b64 s[62:63], vcc
    s_nop 7
    v_min_u32 v80, s61, v80
    v_min_u32 v81, s61, v81
    v_min_u32 v82, s61, v82
    v_min_u32 v83, s61, v83
    buffer_store_dwordx4 v[80:83], v63, {R(sWS)}, s6 offen sc1
    s_mov_b64 exec, s[62:63]""")
    ts(a, 12)
    for q in range(2):
        a(f"""s_lshl_b32 s6, s5, 2
        s_add_u32 s6, s6, {2*q}
        v_xor_b32 v58, s6, v7
        v_lshl_add_u32 v58, v58, 4, v56
        v_lshl_add_u32 v{24+q}, v2, 8, v58""")
    for q in range(4):
        a(f"""s_lshl_b32 s6, s5, 3
        s_add_u32 s6, s6, {2*q}
        s_and_b32 s7, s6, 15
        s_and_b32 s6, s6, 16
        v_xor_b32 v58, s7, v7
        v_add_u32 v58, s6, v58
        v_lshl_add_u32 v58, v58, 4, v56
        v_lshl_add_u32 v58, v2, 9, v58
        v_add_u32 v{26+q}, {L_WO}, v58""")
    a(f"""v_lshlrev_b32 v30, 8, v6
    v_lshl_add_u32 v30, v3, 4, v30
    v_add_u32 v30, {L_CL}, v30""")
    a(f"""s_lshl_b32 s6, s3, 2
    s_add_u32 s6, s6, s5
    s_lshl_b32 s6, s6, 8
    s_add_u32 s6, s6, {WS_STATS}
    v_lshlrev_b32 v58, 6, v3
    s_mov_b32 s7, {SPIN_MAX}""")
    a.label("E2S_POLL")
    for i in range(4):
        a(f"buffer_load_dwordx4 v[{64+4*i}:{67+4*i}], v58, {R(sWS)}, s6 offen offset:{16*i} sc1")
    a("""s_waitcnt vmcnt(0)
    v_max3_u32 v59, v64, v65, v66""")
    for i in range(6):
        a(f"v_max3_u32 v59, v59, v{67+2*i}, v{68+2*i}")
    a("""v_max_u32 v59, v59, v79
    v_cmp_eq_u32 vcc, -1, v59
    s_cbranch_vccz E2S_DONE
    s_sub_u32 s7, s7, 1
    s_cmp_eq_u32 s7, 0
    s_cbranch_scc1 E2S_DONE
    s_sleep 1
    s_branch E2S_POLL""")
    a.label("E2S_DONE")
    a(f"""s_lshl_b32 s6, s3, 2
    s_and_b32 s7, s4, 3
    s_add_u32 s6, s6, s7
    s_lshl_b32 s6, s6, 2
    s_add_u32 s6, s6, s5
    s_lshl_b32 s6, s6, 13
    s_add_u32 s6, s6, {WS_PART}
    s_add_u32 s61, s6, 4096
    s_mov_b32 s7, {SPIN_MAX}""")
    a.label("E2P_POLL")
    for i in range(8):
        a(f"buffer_load_dwordx4 v[{80+4*i}:{83+4*i}], v31, {R(sWS)}, s{6 if i < 4 else 61} offen offset:{1024*(i&3)} sc1")
    ts(a, 13)
    a("""v_max3_f32 v59, v64, v66, v68
    v_max3_f32 v59, v59, v70, v72
    v_max3_f32 v59, v59, v74, v76
    v_max_f32 v59, v59, v78""")
    xg_reduce(a, "v59", "v60", "v_max_f32")
    for i in range(8):
        a(f"v_sub_f32 v{112+i}, v{64+2*i}, v59")
    for i in range(8):
        a(f"v_exp_f32 v{112+i}, v{112+i}")
    a("s_nop 0\nv_mul_f32 v60, v112, v65")
    for i in range(1, 8):
        a(f"v_fmac_f32 v60, v{112+i}, v{65+2*i}")
    xg_reduce(a, "v60", "v61", "v_add_f32")
    a("v_rcp_f32 v60, v60\ns_nop 0")
    for i in range(8):
        a(f"v_mul_f32 v{112+i}, v{112+i}, v60")
    a("""s_waitcnt vmcnt(0)
    v_max3_u32 v59, v80, v81, v82""")
    for i in range(14):
        a(f"v_max3_u32 v59, v59, v{83+2*i}, v{84+2*i}")
    a("""v_max_u32 v59, v59, v111
    v_cmp_eq_u32 vcc, -1, v59
    s_cbranch_vccz E2P_DONE
    s_sub_u32 s7, s7, 1
    s_cmp_eq_u32 s7, 0
    s_cbranch_scc1 E2P_DONE
    s_branch E2P_POLL""")
    a.label("E2P_DONE")
    ts(a, 14)
    for i in range(8):
        for k in range(4):
            src = 80 + 4 * i + k
            a(f"v_lshlrev_b32 v59, 16, v{src}\nv_and_b32 v60, 0xffff0000, v{src}")
            if i == 0:
                a(f"v_mul_f32 v{120+2*k}, v112, v59\nv_mul_f32 v{121+2*k}, v112, v60")
            else:
                a(f"v_fmac_f32 v{120+2*k}, v{112+i}, v59\nv_fmac_f32 v{121+2*k}, v{112+i}, v60")
    for k in range(8):
        xg_reduce(a, f"v{120+k}", "v59", "v_add_f32")
    for k in range(4):
        a(f"v_cvt_pk_bf16_f32 v{120+k}, v{120+2*k}, v{121+2*k}")
    a(f"""s_lshl_b32 s6, s5, 8
    s_add_u32 s6, s6, {L_CL}
    v_lshlrev_b32 v59, 4, v4
    v_add_u32 v59, s6, v59
    ds_write_b128 v59, v[120:123]
    s_waitcnt lgkmcnt(0)
    s_barrier""")
    for t in range(4):
        a(f"ds_read_b128 v[{64+4*t}:{67+4*t}], v30 offset:{64*t}")
    for t in range(4):
        for q in range(2):
            b = 128 + 8 * t + 4 * q
            a(f"ds_read_b64_tr_b16 v[{b}:{b+1}], v{24+q} offset:{L_UV+8192*t}")
            a(f"ds_read_b64_tr_b16 v[{b+2}:{b+3}], v{24+q} offset:{L_UV+8192*t+4096}")
    for t in range(4):
        for q in range(2):
            b = 128 + 8 * t + 4 * q
            a(f"s_waitcnt lgkmcnt({14 - 4*t - 2*q})")
            c = "0" if t == 0 else f"v[{80+4*q}:{83+4*q}]"
            a(f"v_mfma_f32_16x16x32_bf16 v[{80+4*q}:{83+4*q}], v[{b}:{b+3}], v[{64+4*t}:{67+4*t}], {c}")
    for t in range(4):
        for q in range(4):
            b = 128 + 16 * t + 4 * q
            if t < 2:
                continue
            a(f"ds_read_b64_tr_b16 v[{b}:{b+1}], v{26+q} offset:{16384*t}")
            a(f"ds_read_b64_tr_b16 v[{b+2}:{b+3}], v{26+q} offset:{16384*t+8192}")
    a(f"""v_lshlrev_b32 v59, 8, v4
    v_lshl_add_u32 v59, v3, 4, v59
    s_lshl_b32 s6, s5, 6
    s_add_u32 s6, s6, {L_CT}
    v_add_u32 v59, s6, v59
    v_cmp_gt_u32 vcc, 4, v4
    s_nop 2
    v_cvt_pk_bf16_f32 v80, v80, v81
    v_cvt_pk_bf16_f32 v81, v82, v83
    v_cvt_pk_bf16_f32 v82, v84, v85
    v_cvt_pk_bf16_f32 v83, v86, v87
    s_and_saveexec_b64 s[62:63], vcc
    ds_write_b128 v59, v[80:83]
    s_mov_b64 exec, s[62:63]""")
    for t in range(2):
        for q in range(4):
            b = 128 + 16 * t + 4 * q
            a(f"ds_read_b64_tr_b16 v[{b}:{b+1}], v{26+q} offset:{16384*t}")
            a(f"ds_read_b64_tr_b16 v[{b+2}:{b+3}], v{26+q} offset:{16384*t+8192}")
    a("s_waitcnt lgkmcnt(0)\ns_barrier")
    a(f"v_add_u32 v30, {L_CT-L_CL}, v30")
    for t in range(4):
        a(f"ds_read_b128 v[{64+4*t}:{67+4*t}], v30 offset:{64*t}")
    for t in range(4):
        a(f"s_waitcnt lgkmcnt({3-t})")
        for q in range(4):
            b = 128 + 16 * t + 4 * q
            c = "0" if t == 0 else f"v[{80+4*q}:{83+4*q}]"
            a(f"v_mfma_f32_16x16x32_bf16 v[{80+4*q}:{83+4*q}], v[{b}:{b+3}], v[{64+4*t}:{67+4*t}], {c}")
    a(f"""s_lshr_b32 s6, s4, 2
    s_lshl_b32 s6, s6, 3
    s_lshl_b32 s7, s5, 1
    s_add_u32 s6, s6, s7
    s_mul_i32 s6, s6, {SP_ROWS*128}
    s_lshl_b32 s7, s3, 2
    s_and_b32 s61, s4, 3
    s_add_u32 s7, s7, s61
    s_lshl_b32 s7, s7, 7
    s_add_u32 s6, s6, s7
    s_add_u32 s6, s6, {WS_SP}
    s_add_u32 s7, s6, {SP_ROWS*128}
    s_mov_b32 s61, 0xfffffffe
    v_cmp_gt_u32 vcc, 4, v4
    s_and_saveexec_b64 s[62:63], vcc
    s_nop 2""")
    for i in range(16):
        a(f"v_min_u32 v{80+i}, s61, v{80+i}")
    a(f"""buffer_store_dwordx4 v[80:83], v63, {R(sWS)}, s6 offen sc1
    buffer_store_dwordx4 v[84:87], v63, {R(sWS)}, s6 offen offset:64 sc1
    buffer_store_dwordx4 v[88:91], v63, {R(sWS)}, s7 offen sc1
    buffer_store_dwordx4 v[92:95], v63, {R(sWS)}, s7 offen offset:64 sc1
    s_mov_b64 exec, s[62:63]""")
    ts(a, 15)
    a(f"""s_cmp_ge_u32 s2, 64
    s_cbranch_scc1 K_FIN
    v_lshrrev_b32 v2, 3, v0
    v_and_b32 v7, 7, v0            ; chunk
    s_mul_i32 s6, s2, {SP_ROWS*128}
    s_add_u32 s6, s6, {WS_SP}
    v_lshlrev_b32 v58, 4, v0       ; tid*16
    s_lshl_b32 s7, s2, 6
    v_lshlrev_b32 v59, 1, v0
    buffer_load_ushort v28, v59, {R(sX)}, s7 offen
    v_mov_b32 v24, 0
    v_mov_b32 v25, 0
    v_mov_b32 v26, 0
    v_mov_b32 v27, 0
    s_add_u32 s52, s6, 4096
    s_add_u32 s53, s6, 8192
    s_add_u32 s54, s6, 12288
    s_add_u32 s55, s6, 16384
    v_cmp_gt_u32 s[56:57], 28, v2
    s_mov_b32 s58, {SPIN_MAX}""")
    a.label("E3_POLL")
    a(f"""buffer_load_dwordx4 v[8:11], v58, {R(sWS)}, s6 offen sc1
    buffer_load_dwordx4 v[12:15], v58, {R(sWS)}, s52 offen sc1
    buffer_load_dwordx4 v[16:19], v58, {R(sWS)}, s53 offen sc1
    buffer_load_dwordx4 v[20:23], v58, {R(sWS)}, s54 offen sc1
    s_mov_b64 exec, s[56:57]
    buffer_load_dwordx4 v[24:27], v58, {R(sWS)}, s55 offen sc1
    s_mov_b64 exec, -1
    s_waitcnt vmcnt(0)
    v_max3_u32 v29, v8, v9, v10""")
    for i in range(8):
        a(f"v_max3_u32 v29, v29, v{11+2*i}, v{12+2*i}")
    a("""v_max_u32 v29, v29, v27
    v_cmp_eq_u32 vcc, -1, v29
    s_cbranch_vccz E3_DONE
    s_sub_u32 s58, s58, 1
    s_cmp_eq_u32 s58, 0
    s_cbranch_scc1 E3_DONE
    s_branch E3_POLL""")
    a.label("E3_DONE")
    ts(a, 16)
    for i in range(4):
        a(f"v_add_f32 v{8+i}, v{8+i}, v{12+i}\nv_add_f32 v{16+i}, v{16+i}, v{20+i}\nv_add_f32 v{8+i}, v{8+i}, v{16+i}")
    for r in list(range(8, 12)) + list(range(24, 28)):
        a(f"s_nop 1\nv_add_f32_dpp v{r}, v{r}, v{r} row_ror:8 row_mask:0xf bank_mask:0xf")
        xg_reduce(a, f"v{r}", "v29", "v_add_f32")
    L_R = L_QL
    a(f"""s_lshl_b32 s6, s5, 8
    s_add_u32 s6, s6, {L_R}
    v_lshlrev_b32 v30, 4, v7
    v_add_u32 v30, s6, v30
    v_cmp_gt_u32 vcc, 8, v1
    s_and_saveexec_b64 s[62:63], vcc
    ds_write_b128 v30, v[8:11]
    ds_write_b128 v30, v[24:27] offset:128
    s_mov_b64 exec, s[62:63]
    s_waitcnt lgkmcnt(0)
    s_barrier
    v_cmp_gt_u32 vcc, 32, v0
    s_and_saveexec_b64 s[62:63], vcc
    s_cbranch_execz K_FIN
    v_lshlrev_b32 v30, 2, v0
    v_add_u32 v30, {L_R}, v30""")
    for w in range(4):
        a(f"ds_read_b32 v{8+w}, v30 offset:{256*w}\nds_read_b32 v{12+w}, v30 offset:{256*w+128}")
    a(f"""s_waitcnt lgkmcnt(0)
    v_add_f32 v8, v8, v9
    v_add_f32 v10, v10, v11
    v_add_f32 v8, v8, v10           ; s
    v_add_f32 v12, v12, v13
    v_add_f32 v14, v14, v15
    v_add_f32 v12, v12, v14         ; ffn
    v_mul_f32 v13, {f2u(-LOG2E):#x}, v12
    v_exp_f32 v13, v13
    s_nop 0
    v_add_f32 v13, 1.0, v13
    v_rcp_f32 v13, v13
    s_nop 0
    v_mul_f32 v12, v12, v13         ; silu(ffn)
    v_lshlrev_b32 v28, 16, v28
    v_fmac_f32 v28, v8, v12
    v_cvt_pk_bf16_f32 v28, v28, v28
    buffer_store_short v28, v59, {R(sOUT)}, s7 offen""")
    a.label("K_FIN")
    if TS:
        a("s_mov_b64 exec, -1\ns_waitcnt vmcnt(0)")
        ts(a, 17)
        a(f"""s_waitcnt lgkmcnt(0)
        s_cmp_lg_u32 s5, 0
        s_cbranch_scc1 K_END
        v_mov_b32 v250, 0""")
        for p in range(18):
            a(f"v_writelane_b32 v250, s{64+2*p}, {p}")
        a("v_writelane_b32 v250, s100, 30\nv_writelane_b32 v250, s101, 31")
        a(f"""s_lshl_b32 s6, s2, 7
        s_add_u32 s6, s6, {WS_TS}
        v_lshlrev_b32 v251, 2, v1
        v_cmp_gt_u32 vcc, 32, v1
        s_and_saveexec_b64 s[62:63], vcc
        buffer_store_dword v250, v251, {R(sWS)}, s6 offen""")
    a.label("K_END")
    a("s_endpgm")
    return a.text(), name, 256, lds


def main():
    ref = open(f"cdna_kernels/{NAME}.s.ref").read()
    head = []
    for line in ref.split("\n"):
        if line.startswith("; @launch") or line.startswith("; Override") or line.startswith("; grid="):
            continue
        if line.startswith(";"):
            head.append(line)
        else:
            break
    txt, name, grid, lds = fused()
    out = "\n".join(head) + "\n"
    out += f"; @launch grid=({grid},1,1) block=(256,1,1) lds={lds}\n"
    out += '.amdgcn_target "amdgcn-amd-amdhsa--gfx950"\n.text\n'
    out += txt
    out += '.section .rodata,"a"\n'
    out += f""".p2align 6
.amdhsa_kernel {name}
  .amdhsa_next_free_vgpr 512
  .amdhsa_next_free_sgpr 102
  .amdhsa_accum_offset 256
  .amdhsa_group_segment_fixed_size 0
  .amdhsa_kernarg_size 104
  .amdhsa_user_sgpr_count 2
  .amdhsa_user_sgpr_kernarg_segment_ptr 1
  .amdhsa_system_sgpr_workgroup_id_x 1
.end_amdhsa_kernel
"""
    dst = sys.argv[1] if len(sys.argv) > 1 else f"cdna_kernels/{NAME}.s"
    open(dst, "w").write(out)
    print("wrote", dst, len(out))


if __name__ == "__main__":
    main()
```

```python
import sys

NAME = "recurrent_scan__compressed_kv_cla__swiglu_ffn__decode"

WS_QLAT = 0x000000
WS_GU = 0x040000
WS_H1 = 0x080000
WS_STATS = 0x090000
WS_SP = 0x100000
WS_PART = 0x400000
WS_BYTES = 0x10000000
SP_ROWS = 156

QSCALE = (128 ** -0.5) * 1.4426950408889634
LOG2E = 1.4426950408889634


import os
TS = bool(os.environ.get("TS"))


def ts(a, p):
    if TS:
        a(f"s_memrealtime s[{64+2*p}:{65+2*p}]")


def ts_fin(a, kidx, np_):
    if not TS:
        return
    a("s_mov_b64 exec, -1\ns_waitcnt vmcnt(0)")
    ts(a, np_)
    a(f"""s_waitcnt lgkmcnt(0)
    s_cmp_lg_u32 s5, 0
    s_cbranch_scc1 TSEND{kidx}
    v_mov_b32 v250, 0""")
    for p in range(np_ + 1):
        a(f"v_writelane_b32 v250, s{64+2*p}, {p}")
    a(f"""s_lshl_b32 s6, s2, 6
    s_add_u32 s6, s6, {0x8000000 + kidx*256*64}
    v_lshlrev_b32 v251, 2, v1
    v_cmp_gt_u32 vcc, 16, v1
    s_and_saveexec_b64 s[48:49], vcc
    buffer_store_dword v250, v251, s[36:39], s6 offen""")
    a.label(f"TSEND{kidx}")


def f2u(x):
    import struct
    return struct.unpack("<I", struct.pack("<f", x))[0]


class A:
    def __init__(self):
        self.l = []

    def __call__(self, s):
        for line in s.strip("\n").split("\n"):
            self.l.append("    " + line.strip())

    def label(self, s):
        self.l.append(s + ":")

    def raw(self, s):
        self.l.append(s)

    def text(self):
        return "\n".join(self.l) + "\n"


def srd(a, d, lo, hi, nbytes):
    a(f"""s_mov_b32 s{d}, s{lo}
    s_mov_b32 s{d+1}, s{hi}
    s_mov_b32 s{d+2}, {nbytes}
    s_mov_b32 s{d+3}, 0x00020000""")


def header(a, name):
    a.raw(f".globl {name}")
    a.raw(".p2align 8")
    a.raw(f".type {name},@function")
    a.label(name)


def kd(name, vgpr, sgpr=96):
    acc = (vgpr + 3) // 4 * 4
    return f""".p2align 6
.amdhsa_kernel {name}
  .amdhsa_next_free_vgpr {vgpr}
  .amdhsa_next_free_sgpr {sgpr}
  .amdhsa_accum_offset {acc}
  .amdhsa_group_segment_fixed_size 0
  .amdhsa_kernarg_size 104
  .amdhsa_user_sgpr_count 2
  .amdhsa_user_sgpr_kernarg_segment_ptr 1
  .amdhsa_system_sgpr_workgroup_id_x 1
.end_amdhsa_kernel
"""


def wave_sum(a, v, t):
    for r in (8, 4, 2, 1):
        a(f"s_nop 1\nv_add_f32_dpp {v}, {v}, {v} row_ror:{r} row_mask:0xf bank_mask:0xf")
    xg_reduce(a, v, t, "v_add_f32")


def xg_reduce(a, v, t, op):
    a(f"""v_mov_b32 {t}, {v}
    s_nop 1
    v_permlane16_swap_b32 {v}, {t}
    s_nop 1
    {op} {v}, {v}, {t}
    v_mov_b32 {t}, {v}
    s_nop 1
    v_permlane32_swap_b32 {v}, {t}
    s_nop 1
    {op} {v}, {v}, {t}""")


def k1():
    a = A()
    name = "k1_kernel"
    header(a, name)
    L_WQ = 0
    L_FT = 131072
    L_XN = L_FT + 16384
    L_QP = L_XN + 4096
    L_Q = L_QP + 8192
    lds = L_Q + 1024
    a("""s_load_dwordx2 s[8:9], s[0:1], 0
    s_load_dwordx4 s[12:15], s[0:1], 16
    s_load_dwordx4 s[16:19], s[0:1], 56
    s_load_dwordx2 s[10:11], s[0:1], 96
    s_cmp_ge_u32 s2, 256
    s_cbranch_scc1 K1_END
    v_and_b32 v1, 63, v0
    v_lshrrev_b32 v2, 6, v0
    s_and_b32 s3, s2, 7
    v_readfirstlane_b32 s5, v2
    s_lshr_b32 s4, s2, 3
    s_and_b32 s6, s4, 3
    s_lshl_b32 s6, s6, 3
    s_or_b32 s3, s3, s6            ; s3 = h
    s_lshr_b32 s4, s2, 5           ; s4 = j
    s_min_u32 s6, s2, 223
    s_and_b32 s44, s6, 3           ; ks
    s_lshr_b32 s45, s6, 2          ; cb 0..55
    s_cmp_ge_u32 s45, 28
    s_cselect_b32 s46, 1, 0        ; mat
    s_mul_i32 s47, s46, 28
    s_sub_u32 s47, s45, s47        ; cbk 0..27
    v_lshrrev_b32 v3, 4, v1        ; g = l>>4
    v_and_b32 v4, 15, v1           ; i16
    s_waitcnt lgkmcnt(0)""")
    ts(a, 0)
    srd(a, 20, 8, 9, 4096)
    srd(a, 24, 12, 13, 4194304)
    srd(a, 28, 14, 15, 4194304)
    a("""s_cmp_eq_u32 s46, 1
    s_cselect_b32 s16, s18, s16
    s_cselect_b32 s17, s19, s17""")
    srd(a, 32, 16, 17, 1835008)
    srd(a, 36, 10, 11, WS_BYTES)
    a("""s_lshl_b32 s6, s5, 10
    v_lshlrev_b32 v5, 4, v1
    buffer_load_dwordx4 v[8:11], v5, s[20:23], s6 offen""")
    a("""s_lshl_b32 s6, s4, 6
    s_lshl_b32 s7, s5, 4
    s_add_u32 s6, s6, s7
    s_lshl_b32 s6, s6, 13
    s_lshl_b32 s7, s3, 8
    s_add_u32 s6, s6, s7
    v_lshlrev_b32 v5, 13, v4
    v_lshl_add_u32 v5, v3, 4, v5""")
    for t in range(4):
        a(f"buffer_load_dwordx4 v[{12+4*t}:{15+4*t}], v5, s[28:31], s6 offen offset:{64*t}")
    a("""v_lshrrev_b32 v5, 3, v1
    s_movk_i32 s6, 3584
    v_mul_lo_u32 v5, v5, s6
    v_and_b32 v6, 7, v1
    v_lshlrev_b32 v7, 1, v3
    v_and_b32 v7, 6, v7
    v_xor_b32 v6, v6, v7
    v_lshl_add_u32 v28, v6, 4, v5
    s_lshl_b32 s6, s44, 7          ; 128*ks
    s_lshl_b32 s7, s5, 5
    s_add_u32 s6, s6, s7
    s_mul_i32 s6, s6, 3584
    s_lshl_b32 s7, s47, 7
    s_add_u32 s6, s6, s7           ; soffset
    s_lshl_b32 s7, s5, 12          ; w*4096
    """)
    a(f"s_add_u32 m0, s7, {L_FT}")
    for i in range(4):
        a("s_nop 0\nbuffer_load_dwordx4 v28, s[32:35], s6 offen lds")
        if i < 3:
            a(f"s_add_u32 s6, s6, {8*3584}\ns_add_u32 m0, m0, 1024")
    a("""v_lshlrev_b32 v5, 1, v3
    v_xor_b32 v5, v5, v4
    v_lshlrev_b32 v5, 4, v5
    v_lshl_add_u32 v29, v3, 13, v5
    v_xor_b32 v30, 0x80, v29
    s_lshl_b32 s6, s5, 20          ; 128w*8192
    s_lshl_b32 s7, s3, 8
    s_add_u32 s6, s6, s7
    s_lshl_b32 m0, s5, 15          ; 128w*256""")
    for i in range(32):
        a(f"s_nop 0\nbuffer_load_dwordx4 v{29 + (i & 1)}, s[24:27], s6 offen lds")
        if i < 31:
            a(f"s_add_u32 s6, s6, {4*8192}\ns_add_u32 m0, m0, 1024")
    a("""v_bfe_u32 v5, v1, 2, 2         ; r
    v_and_b32 v6, 3, v1            ; c'
    v_and_b32 v7, 1, v3
    v_lshl_add_u32 v7, v7, 2, v5   ; 4(g&1)+r
    v_lshlrev_b32 v7, 1, v7        ; f
    v_lshl_add_u32 v31, v3, 2, v5  ; rowl = 4g+r
    s_lshl_b32 s6, s5, 7
    v_add_u32 v32, s6, v31         ; 128w + rowl
    v_lshlrev_b32 v32, 8, v32      ; *256
    v_and_b32 v33, 1, v6
    v_lshl_add_u32 v32, v33, 3, v32   ; + (c'&1)*8
    v_lshrrev_b32 v34, 1, v6       ; c'>>1
    v_lshl_add_u32 v32, v34, 4, v32   ; + (c'>>1)*16""")
    for n in range(8):
        a(f"v_xor_b32 v35, {2*n}, v7\nv_lshl_add_u32 v{36+n}, v35, 4, v32")
    a(f"""v_and_b32 v35, 1, v3
    v_lshlrev_b32 v35, 1, v35
    v_lshrrev_b32 v44, 1, v5
    v_add_u32 v35, v35, v44
    v_lshlrev_b32 v35, 1, v35       ; f3
    s_lshl_b32 s6, s5, 1
    v_xor_b32 v35, s6, v35
    v_add_u32 v35, v35, v34
    v_lshlrev_b32 v35, 4, v35
    v_lshl_add_u32 v35, v31, 7, v35
    v_lshl_add_u32 v35, v33, 3, v35
    v_add_u32 v44, {L_FT}, v35""")
    a(f"""v_lshlrev_b32 v45, 10, v6
    v_lshl_add_u32 v45, v3, 4, v45
    v_add_u32 v45, {L_XN}, v45""")
    a(f"""v_lshrrev_b32 v46, 2, v1
    v_lshlrev_b32 v46, 6, v46
    v_lshl_add_u32 v46, v33, 5, v46
    v_lshl_add_u32 v46, v34, 3, v46
    s_lshl_b32 s6, s5, 10
    s_add_u32 s6, s6, {L_XN}
    v_add_u32 v46, s6, v46""")
    ts(a, 1)
    a("s_waitcnt vmcnt(40)")
    ts(a, 2)
    for i in range(4):
        a(f"v_lshlrev_b32 v{48+2*i}, 16, v{8+i}\nv_and_b32 v{49+2*i}, 0xffff0000, v{8+i}")
    a("""v_add_f32 v56, v48, v49
    v_add_f32 v57, v50, v51
    v_add_f32 v58, v52, v53
    v_add_f32 v59, v54, v55
    v_add_f32 v56, v56, v57
    v_add_f32 v58, v58, v59
    v_add_f32 v56, v56, v58""")
    wave_sum(a, "v56", "v57")
    a(f"v_mul_f32 v56, {f2u(1.0/512):#x}, v56")
    for i in range(8):
        a(f"v_sub_f32 v{48+i}, v{48+i}, v56")
    a("v_mul_f32 v57, v48, v48")
    for i in range(1, 8):
        a(f"v_fmac_f32 v57, v{48+i}, v{48+i}")
    wave_sum(a, "v57", "v58")
    a(f"""v_mov_b32 v58, {f2u(1e-5):#x}
    v_fmac_f32 v58, {f2u(1.0/512):#x}, v57
    v_rsq_f32 v58, v58
    s_nop 0""")
    for i in range(8):
        a(f"v_mul_f32 v{48+i}, v{48+i}, v58")
    for i in range(4):
        a(f"v_cvt_pk_bf16_f32 v{60+i}, v{48+2*i}, v{49+2*i}")
    a("""ds_write_b64 v46, v[60:61]
    ds_write_b64 v46, v[62:63] offset:16
    s_waitcnt lgkmcnt(0)
    s_barrier""")
    ts(a, 3)
    a("""s_lshl_b32 s6, s5, 8
    v_add_u32 v47, s6, v45""")
    for tt in range(4):
        a(f"ds_read_b128 v[{64+4*tt}:{67+4*tt}], v47 offset:{64*tt}")
    for tt in range(4):
        a(f"s_waitcnt vmcnt({24-8*tt})")
        for n in range(8):
            a(f"ds_read_b64_tr_b16 v[{112+4*n}:{113+4*n}], v{36+n} offset:{8192*tt}")
            a(f"ds_read_b64_tr_b16 v[{114+4*n}:{115+4*n}], v{36+n} offset:{8192*tt+4096}")
        for n in range(8):
            a(f"s_waitcnt lgkmcnt({14-2*n})")
            c = "0" if tt == 0 else f"v[{80+4*n}:{83+4*n}]"
            a(f"v_mfma_f32_16x16x32_bf16 v[{80+4*n}:{83+4*n}], v[{112+4*n}:{115+4*n}], v[{64+4*tt}:{67+4*tt}], {c}")
    ts(a, 4)
    a(f"""v_lshlrev_b32 v47, 9, v4        ; b*512
    v_lshl_add_u32 v47, v3, 4, v47  ; + g*16
    s_lshl_b32 s6, s5, 11
    s_add_u32 s6, s6, {L_QP}
    v_add_u32 v47, s6, v47
    v_cmp_gt_u32 vcc, 4, v4
    s_and_saveexec_b64 s[48:49], vcc
    s_nop 4""")
    for n in range(8):
        a(f"ds_write_b128 v47, v[{80+4*n}:{83+4*n}] offset:{64*n}")
    a("""s_mov_b64 exec, s[48:49]
    s_waitcnt lgkmcnt(0)
    s_barrier""")
    ts(a, 5)
    a(f"""s_lshl_b32 s6, s5, 9
    s_add_u32 s6, s6, {L_QP}
    v_lshlrev_b32 v47, 3, v1
    v_add_u32 v47, s6, v47""")
    for w in range(4):
        a(f"ds_read_b64 v[{48+2*w}:{49+2*w}], v47 offset:{2048*w}")
    a("""s_lshl_b32 s6, s44, 8
    v_add_u32 v59, s6, v45""")
    for t in range(4):
        a(f"ds_read_b128 v[{64+4*t}:{67+4*t}], v59 offset:{64*t}")
    for t in range(4):
        a(f"ds_read_b64_tr_b16 v[{112+4*t}:{113+4*t}], v44 offset:{4096*t}")
        a(f"ds_read_b64_tr_b16 v[{114+4*t}:{115+4*t}], v44 offset:{4096*t+2048}")
    a("""s_waitcnt lgkmcnt(12)
    v_add_f32 v48, v48, v50
    v_add_f32 v49, v49, v51
    v_add_f32 v52, v52, v54
    v_add_f32 v53, v53, v55
    v_add_f32 v48, v48, v52
    v_add_f32 v49, v49, v53
    v_cvt_pk_bf16_f32 v48, v48, v49""")
    a(f"""s_lshl_b32 s6, s5, 8
    s_add_u32 s6, s6, {L_Q}
    v_lshlrev_b32 v47, 2, v1
    v_add_u32 v47, s6, v47
    ds_write_b32 v47, v48
    s_waitcnt lgkmcnt(0)
    s_barrier""")
    a(f"""v_lshlrev_b32 v47, 8, v6
    v_lshl_add_u32 v47, v3, 4, v47
    v_add_u32 v47, {L_Q}, v47""")
    for t in range(4):
        a(f"ds_read_b128 v[{80+4*t}:{83+4*t}], v47 offset:{64*t}")
    for t in range(4):
        c = "0" if t == 0 else "v[96:99]"
        a(f"v_mfma_f32_16x16x32_bf16 v[96:99], v[{112+4*t}:{115+4*t}], v[{64+4*t}:{67+4*t}], {c}")
    a("s_waitcnt lgkmcnt(0)")
    for t in range(4):
        c = "0" if t == 0 else "v[100:103]"
        a(f"v_mfma_f32_16x16x32_bf16 v[100:103], v[{12+4*t}:{15+4*t}], v[{80+4*t}:{83+4*t}], {c}")
    a(f"""s_lshl_b32 s6, s44, 1
    s_add_u32 s6, s6, s46
    s_mul_i32 s6, s6, {4*7168}
    s_lshl_b32 s7, s47, 8
    s_add_u32 s6, s6, s7
    s_lshl_b32 s7, s5, 6
    s_add_u32 s6, s6, s7
    s_add_u32 s6, s6, {WS_GU}
    s_movk_i32 s7, 7168
    v_mul_lo_u32 v47, v4, s7
    v_lshl_add_u32 v47, v3, 4, v47""")
    a(f"""s_lshr_b32 s7, s3, 4            ; hg
    s_lshl_b32 s7, s7, 4
    s_lshl_b32 s50, s4, 1
    s_add_u32 s7, s7, s50
    s_lshr_b32 s50, s5, 1
    s_add_u32 s7, s7, s50           ; hg*16 + t'
    s_lshl_b32 s7, s7, 6
    s_and_b32 s50, s5, 1
    s_lshl_b32 s50, s50, 5
    s_add_u32 s7, s7, s50           ; + 2(w&1)*16
    s_and_b32 s50, s3, 15
    s_add_u32 s7, s7, s50
    s_lshl_b32 s7, s7, 4
    s_add_u32 s7, s7, {WS_QLAT}
    v_lshlrev_b32 v48, 15, v4       ; b*2*16*64*16 = b*32768
    v_lshrrev_b32 v49, 1, v3
    v_lshl_add_u32 v48, v49, 8, v48 ; (g>>1)*16*16
    v_and_b32 v49, 1, v3
    v_lshl_add_u32 v48, v49, 3, v48
    s_mov_b32 s50, {f2u(QSCALE):#x}
    v_mul_f32 v100, s50, v100
    v_mul_f32 v101, s50, v101
    v_mul_f32 v102, s50, v102
    v_mul_f32 v103, s50, v103
    v_cvt_pk_bf16_f32 v100, v100, v101
    v_cvt_pk_bf16_f32 v101, v102, v103
    v_cmp_gt_u32 vcc, 4, v4
    s_and_saveexec_b64 s[48:49], vcc
    buffer_store_dwordx2 v[100:101], v48, s[36:39], s7 offen
    s_cmp_ge_u32 s2, 224
    s_cbranch_scc1 K1_FIN
    buffer_store_dwordx4 v[96:99], v47, s[36:39], s6 offen""")
    a.label("K1_FIN")
    ts_fin(a, 0, 6)
    a.label("K1_END")
    a("s_endpgm")
    return a.text(), name, 256, lds, 144


def k2():
    a = A()
    name = "k2_kernel"
    header(a, name)
    L_T = 0
    L_QL = 131072
    L_P = L_QL + 16384
    L_MX = L_P + 4096
    L_LS = L_MX + 256
    lds = L_LS + 256
    a("""s_load_dwordx2 s[8:9], s[0:1], 8
    s_load_dwordx2 s[10:11], s[0:1], 96
    s_cmp_ge_u32 s2, 256
    s_cbranch_scc1 K2_END
    v_and_b32 v1, 63, v0
    v_lshrrev_b32 v2, 6, v0
    s_and_b32 s3, s2, 7
    v_readfirstlane_b32 s5, v2
    s_lshr_b32 s4, s2, 3
    s_and_b32 s6, s4, 1            ; hg
    s_lshr_b32 s4, s4, 1
    s_lshl_b32 s4, s4, 3
    s_or_b32 s3, s3, s4            ; T = tile 0..127
    s_lshr_b32 s4, s3, 5           ; b
    s_and_b32 s7, s3, 31           ; s
    s_min_u32 s44, s2, 27          ; h1 job
    v_lshrrev_b32 v3, 4, v1        ; g
    v_and_b32 v4, 15, v1           ; i16
    s_waitcnt lgkmcnt(0)""")
    ts(a, 0)
    srd(a, 20, 8, 9, 16777216)
    srd(a, 36, 10, 11, WS_BYTES)
    a(f"""s_mul_i32 s45, s5, 7168
    s_lshl_b32 s46, s44, 8
    s_add_u32 s45, s45, s46
    s_add_u32 s45, s45, {WS_GU}
    v_lshlrev_b32 v5, 2, v1""")
    for km in range(8):
        a(f"buffer_load_dword v{8+km}, v5, s[36:39], s45 offen")
        if km < 7:
            a(f"s_add_u32 s45, s45, {4*7168}")
    a(f"""s_lshl_b32 s45, s4, 1
    s_add_u32 s45, s45, s6
    s_lshl_b32 s45, s45, 14
    s_lshl_b32 s46, s5, 12
    s_add_u32 s45, s45, s46
    s_add_u32 s45, s45, {WS_QLAT}
    s_add_u32 m0, s46, {L_QL}
    v_lshlrev_b32 v5, 4, v1""")
    for i in range(4):
        a(f"buffer_load_dwordx4 v5, s[36:39], s45 offen offset:{1024*i} lds")
    for k in range(8):
        a(f"v_xor_b32 v{16+k}, {k << 5}, v5")
    a("""s_lshl_b32 s45, s3, 17          ; T*128 KiB
    s_lshl_b32 s46, s5, 15
    s_add_u32 s45, s45, s46
    s_mov_b32 m0, s46""")
    for i in range(32):
        if i % 4 == 0:
            a("s_nop 0")
        a(f"buffer_load_dwordx4 v{16 + (i & 7)}, s[20:23], s45 offen offset:{1024*(i&3)} lds")
        if i % 4 == 3 and i < 31:
            a("s_add_u32 s45, s45, 4096\ns_add_u32 m0, m0, 4096")
    a("""v_and_b32 v6, 7, v4
    v_lshlrev_b32 v6, 1, v6         ; f
    s_lshl_b32 s45, s5, 5
    v_add_u32 v7, s45, v4
    v_lshlrev_b32 v7, 10, v7""")
    for tq in range(4):
        a(f"v_add_u32 v24, {4*tq}, v3\nv_xor_b32 v24, v24, v6\nv_lshl_add_u32 v{26+tq}, v24, 4, v7")
    a(f"v_lshlrev_b32 v30, 4, v1\nv_add_u32 v30, {L_QL}, v30")
    a("""v_bfe_u32 v5, v1, 2, 2         ; r
    v_and_b32 v6, 3, v1            ; c'
    v_and_b32 v7, 1, v3
    v_lshl_add_u32 v7, v7, 2, v5
    v_lshlrev_b32 v7, 1, v7        ; f
    v_lshl_add_u32 v24, v3, 2, v5  ; 4g+r
    v_lshlrev_b32 v24, 10, v24
    v_and_b32 v25, 1, v6
    v_lshl_add_u32 v24, v25, 3, v24
    v_lshrrev_b32 v25, 1, v6
    v_lshl_add_u32 v24, v25, 4, v24
    s_lshl_b32 s45, s5, 8          ; 16w*16
    v_add_u32 v24, s45, v24""")
    for n in range(8):
        a(f"v_xor_b32 v25, {2*n}, v7\nv_lshl_add_u32 v{32+n}, v25, 4, v24\nv_add_u32 v{40+n}, 0x10000, v{32+n}")
    ts(a, 1)
    a("s_waitcnt vmcnt(32)\ns_barrier")
    ts(a, 2)
    for t in range(16):
        a(f"ds_read_b128 v[{64+4*t}:{67+4*t}], v30 offset:{1024*t}")
    for kb in range(2):
        a(f"s_waitcnt vmcnt({16-16*kb})")
        for t in range(16):
            a(f"ds_read_b128 v[{128+4*t}:{131+4*t}], v{26+(t&3)} offset:{(t>>2)*256+kb*16384}")
        for t in range(16):
            a(f"s_waitcnt lgkmcnt({15-t})")
            c = "0" if t == 0 else f"v[{48+4*kb}:{51+4*kb}]"
            a(f"v_mfma_f32_16x16x32_bf16 v[{48+4*kb}:{51+4*kb}], v[{128+4*t}:{131+4*t}], v[{64+4*t}:{67+4*t}], {c}")
    ts(a, 3)
    a(f"""v_lshlrev_b32 v56, 4, v4       ; head*16
    s_lshl_b32 s45, s5, 2
    s_add_u32 s46, s45, {L_MX}
    v_add_u32 v57, s46, v56         ; MX[head][w]
    v_add_u32 v58, {L_MX}, v56
    s_nop 4
    v_max3_f32 v59, v48, v49, v50
    v_max3_f32 v59, v59, v51, v52
    v_max3_f32 v59, v59, v53, v54
    v_max_f32 v59, v59, v55""")
    xg_reduce(a, "v59", "v60", "v_max_f32")
    a(f"""ds_write_b32 v57, v59
    s_waitcnt lgkmcnt(0)
    s_barrier
    ds_read_b128 v[60:63], v58
    s_waitcnt lgkmcnt(0)
    v_max3_f32 v59, v60, v61, v62
    v_max_f32 v59, v59, v63         ; m""")
    for i in range(8):
        a(f"v_sub_f32 v{48+i}, v{48+i}, v59")
    for i in range(8):
        a(f"v_exp_f32 v{48+i}, v{48+i}")
    a("""s_nop 0
    v_add_f32 v60, v48, v49
    v_add_f32 v61, v50, v51
    v_add_f32 v62, v52, v53
    v_add_f32 v63, v54, v55
    v_add_f32 v60, v60, v61
    v_add_f32 v62, v62, v63
    v_add_f32 v60, v60, v62""")
    for i in range(4):
        a(f"v_cvt_pk_bf16_f32 v{48+i}, v{48+2*i}, v{49+2*i}")
    a(f"""s_lshl_b32 s45, s5, 10
    s_add_u32 s45, s45, {L_P}
    v_lshlrev_b32 v61, 4, v1
    v_add_u32 v62, s45, v61
    ds_write_b128 v62, v[48:51]""")
    xg_reduce(a, "v60", "v63", "v_add_f32")
    a(f"""v_add_u32 v57, {L_LS-L_MX}, v57
    ds_write_b32 v57, v60
    v_add_u32 v61, {L_P}, v61
    s_waitcnt lgkmcnt(0)
    s_barrier""")
    for u in range(4):
        a(f"ds_read_b128 v[{64+4*u}:{67+4*u}], v61 offset:{1024*u}")
    a(f"ds_read_b128 v[60:63], v58 offset:{L_LS-L_MX}")
    ts(a, 4)
    def pv_reads(u):
        base = 128 + 32 * (u & 1)
        ab = 32 if u < 2 else 40
        off = (u & 1) * 32768
        for n in range(8):
            a(f"ds_read_b64_tr_b16 v[{base+4*n}:{base+4*n+1}], v{ab+n} offset:{off}")
            a(f"ds_read_b64_tr_b16 v[{base+4*n+2}:{base+4*n+3}], v{ab+n} offset:{off+16384}")
    pv_reads(0)
    for u in range(4):
        if u < 3:
            pv_reads(u + 1)
        base = 128 + 32 * (u & 1)
        for n in range(8):
            rem = (16 if u < 3 else 0) + 14 - 2 * n
            a(f"s_waitcnt lgkmcnt({min(rem, 15)})")
            c = "0" if u == 0 else f"v[{80+4*n}:{83+4*n}]"
            a(f"v_mfma_f32_16x16x32_bf16 v[{80+4*n}:{83+4*n}], v[{base+4*n}:{base+4*n+3}], v[{64+4*u}:{67+4*u}], {c}")
    ts(a, 5)
    a(f"""v_add_f32 v60, v60, v61
    v_add_f32 v62, v62, v63
    v_add_f32 v60, v60, v62         ; L
    s_lshl_b32 s45, s6, 4           ; hg*16
    s_lshl_b32 s45, s45, 2
    s_add_u32 s45, s45, s4          ; (hg*16)*4 + b
    s_lshl_b32 s45, s45, 2
    s_and_b32 s46, s7, 3
    s_add_u32 s45, s45, s46
    s_lshl_b32 s45, s45, 3
    s_lshr_b32 s46, s7, 2
    s_add_u32 s45, s45, s46
    s_lshl_b32 s45, s45, 3
    s_add_u32 s45, s45, {WS_STATS}
    v_lshlrev_b32 v56, 10, v4       ; head * (4*4*8*8=1024)
    v_mov_b32 v61, v60
    v_mov_b32 v60, v59
    v_cmp_gt_u32 vcc, 16, v1
    s_cmp_lg_u32 s5, 0
    s_cbranch_scc1 K2_NOSTAT
    s_and_saveexec_b64 s[48:49], vcc
    buffer_store_dwordx2 v[60:61], v56, s[36:39], s45 offen
    s_mov_b64 exec, s[48:49]""")
    a.label("K2_NOSTAT")
    a(f"""s_lshl_b32 s45, s6, 6           ; hg*16*4
    s_add_u32 s45, s45, s5
    s_lshl_b32 s45, s45, 2
    s_add_u32 s45, s45, s4
    s_lshl_b32 s45, s45, 5
    s_add_u32 s45, s45, s7
    s_lshl_b32 s45, s45, 8
    s_add_u32 s45, s45, {WS_PART}
    v_lshlrev_b32 v56, 17, v4       ; head * 4*4*32*256
    v_lshl_add_u32 v56, v3, 4, v56""")
    for np_ in range(4):
        b0 = 80 + 8 * np_
        a(f"""v_cvt_pk_bf16_f32 v{b0}, v{b0}, v{b0+1}
        v_cvt_pk_bf16_f32 v{b0+1}, v{b0+2}, v{b0+3}
        v_cvt_pk_bf16_f32 v{b0+2}, v{b0+4}, v{b0+5}
        v_cvt_pk_bf16_f32 v{b0+3}, v{b0+6}, v{b0+7}
        buffer_store_dwordx4 v[{b0}:{b0+3}], v56, s[36:39], s45 offen offset:{64*np_}""")
    a(f"""s_cmp_ge_u32 s2, 28
    s_cbranch_scc1 K2_FIN
    v_add_f32 v8, v8, v10
    v_add_f32 v12, v12, v14
    v_add_f32 v9, v9, v11
    v_add_f32 v13, v13, v15
    v_add_f32 v8, v8, v12           ; g
    v_add_f32 v9, v9, v13           ; u
    v_mul_f32 v10, {f2u(-LOG2E):#x}, v8
    v_exp_f32 v10, v10
    s_nop 0
    v_add_f32 v10, 1.0, v10
    v_rcp_f32 v10, v10
    s_nop 0
    v_mul_f32 v8, v8, v10
    v_mul_f32 v8, v8, v9
    v_cvt_pk_bf16_f32 v8, v8, v8""")
    a(f"""v_and_b32 v10, 32, v1
    v_bfe_u32 v11, v1, 2, 2
    v_lshl_add_u32 v10, v11, 3, v10
    v_bfe_u32 v11, v1, 4, 1
    v_lshl_add_u32 v10, v11, 2, v10
    v_and_b32 v11, 3, v1
    v_add_u32 v10, v10, v11
    v_lshlrev_b32 v10, 1, v10
    s_mul_i32 s45, s5, 3584
    s_lshl_b32 s46, s44, 7
    s_add_u32 s45, s45, s46
    s_add_u32 s45, s45, {WS_H1}
    buffer_store_short v8, v10, s[36:39], s45 offen""")
    a.label("K2_FIN")
    ts_fin(a, 1, 6)
    a.label("K2_END")
    a("s_endpgm")
    return a.text(), name, 256, lds, 192


def k3():
    a = A()
    name = "k3_kernel"
    header(a, name)
    L_UV = 0
    L_WO = 32768
    L_DN = L_WO + 65536
    L_CL = L_DN + 8192
    L_CT = L_CL + 1024
    lds = L_CT + 1024
    a("""s_load_dwordx4 s[12:15], s[0:1], 32
    s_load_dwordx2 s[8:9], s[0:1], 72
    s_load_dwordx2 s[10:11], s[0:1], 96
    s_cmp_ge_u32 s2, 256
    s_cbranch_scc1 K3_END
    v_and_b32 v1, 63, v0
    v_lshrrev_b32 v2, 6, v0
    s_and_b32 s3, s2, 7
    v_readfirstlane_b32 s5, v2
    s_lshr_b32 s4, s2, 3
    s_and_b32 s6, s4, 3
    s_lshl_b32 s6, s6, 3
    s_or_b32 s3, s3, s6            ; h
    s_lshr_b32 s4, s2, 5           ; j
    s_and_b32 s6, s4, 3            ; cj
    s_lshr_b32 s7, s4, 2           ; mj
    s_min_u32 s44, s2, 223
    s_lshr_b32 s45, s44, 3         ; fs 0..27
    s_and_b32 s44, s44, 7          ; ms 0..7
    v_lshrrev_b32 v3, 4, v1        ; g
    v_and_b32 v4, 15, v1           ; i16
    s_waitcnt lgkmcnt(0)""")
    ts(a, 0)
    srd(a, 20, 12, 13, 4194304)
    srd(a, 24, 14, 15, 4194304)
    srd(a, 28, 8, 9, 1835008)
    srd(a, 36, 10, 11, WS_BYTES)
    a(f"""s_lshl_b32 s46, s3, 2
    s_add_u32 s46, s46, s5
    s_lshl_b32 s46, s46, 8
    s_add_u32 s46, s46, {WS_STATS}
    v_lshlrev_b32 v5, 6, v3""")
    for i in range(4):
        a(f"buffer_load_dwordx4 v[{8+4*i}:{11+4*i}], v5, s[36:39], s46 offen offset:{16*i}")
    a(f"""s_lshl_b32 s46, s3, 2
    s_add_u32 s46, s46, s6
    s_lshl_b32 s46, s46, 2
    s_add_u32 s46, s46, s5
    s_lshl_b32 s46, s46, 13
    s_add_u32 s46, s46, {WS_PART}
    s_add_u32 s47, s46, 4096
    v_lshlrev_b32 v5, 4, v1""")
    for i in range(8):
        a(f"buffer_load_dwordx4 v[{24+4*i}:{27+4*i}], v5, s[36:39], s{46 if i < 4 else 47} offen offset:{1024*(i&3)}")
    a(f"""v_and_b32 v6, 3, v1
    s_movk_i32 s46, 3584
    v_mul_lo_u32 v7, v6, s46
    v_lshl_add_u32 v7, v3, 4, v7
    s_lshl_b32 s46, s45, 7
    s_add_u32 s46, s46, {WS_H1}
    buffer_load_dwordx4 v[56:59], v7, s[36:39], s46 offen
    buffer_load_dwordx4 v[60:63], v7, s[36:39], s46 offen offset:64""")
    a("""v_lshlrev_b32 v5, 1, v3
    v_xor_b32 v5, v5, v4
    v_lshlrev_b32 v5, 4, v5
    v_lshl_add_u32 v64, v3, 13, v5
    v_xor_b32 v65, 0x80, v64
    s_lshl_b32 s46, s6, 7
    s_lshl_b32 s47, s5, 5
    s_add_u32 s46, s46, s47
    s_lshl_b32 s46, s46, 13
    s_lshl_b32 s47, s3, 8
    s_add_u32 s46, s46, s47""")
    a(f"s_lshl_b32 m0, s5, 13")
    for i in range(8):
        a(f"s_nop 0\nbuffer_load_dwordx4 v{64+(i&1)}, s[20:23], s46 offen lds")
        if i < 7:
            a(f"s_add_u32 s46, s46, {4*8192}\ns_add_u32 m0, m0, 1024")
    a("""v_lshrrev_b32 v5, 5, v1        ; l>>5
    v_and_b32 v6, 31, v1""")
    for q in range(4):
        a(f"""v_add_u32 v7, {2*q}, v5
        v_lshlrev_b32 v7, 1, v7
        v_xor_b32 v7, v7, v6
        v_lshlrev_b32 v7, 4, v7
        v_lshl_add_u32 v{66+q}, v5, 10, v7""")
    a(f"""s_lshl_b32 s46, s3, 17
    s_lshl_b32 s47, s5, 15
    s_add_u32 s46, s46, s47
    s_lshl_b32 s47, s7, 9
    s_add_u32 s46, s46, s47
    s_lshl_b32 s47, s5, 14
    s_add_u32 m0, s47, {L_WO}""")
    for i in range(16):
        a(f"s_nop 0\nbuffer_load_dwordx4 v{66+(i&3)}, s[24:27], s46 offen lds")
        if i < 15:
            a("s_add_u32 s46, s46, 2048\ns_add_u32 m0, m0, 1024")
    a(f"""v_lshrrev_b32 v5, 3, v1
    v_and_b32 v6, 7, v1
    v_lshlrev_b32 v7, 1, v3
    v_and_b32 v7, 6, v7
    v_xor_b32 v6, v6, v7
    v_lshlrev_b32 v6, 4, v6
    v_lshl_add_u32 v70, v5, 10, v6
    s_lshl_b32 s46, s45, 6
    s_lshl_b32 s47, s5, 4
    s_add_u32 s46, s46, s47
    s_lshl_b32 s46, s46, 10
    s_lshl_b32 s47, s44, 7
    s_add_u32 s46, s46, s47
    s_lshl_b32 s47, s5, 11
    s_add_u32 m0, s47, {L_DN}
    s_nop 0
    buffer_load_dwordx4 v70, s[28:31], s46 offen lds
    s_add_u32 s46, s46, 8192
    s_add_u32 m0, m0, 1024
    s_nop 0
    buffer_load_dwordx4 v70, s[28:31], s46 offen lds""")
    a("""v_bfe_u32 v5, v1, 2, 2         ; r
    v_and_b32 v6, 3, v1            ; c'
    v_and_b32 v7, 1, v3
    v_lshl_add_u32 v7, v7, 2, v5
    v_lshlrev_b32 v7, 1, v7        ; f
    v_lshl_add_u32 v71, v3, 2, v5  ; rowl = 4g+r
    v_and_b32 v72, 1, v6
    v_lshrrev_b32 v73, 1, v6
    v_lshlrev_b32 v74, 3, v72
    v_lshl_add_u32 v74, v73, 4, v74   ; (c'&1)*8 + (c'>>1)*16""")
    a("s_lshl_b32 s46, s5, 2")
    for q in range(2):
        a(f"""v_add_u32 v75, s46, {2*q}
        """.replace("v_add_u32 v75, s46, %d" % (2 * q), "v_mov_b32 v75, s46\nv_add_u32 v75, %d, v75" % (2 * q)))
        a(f"""v_xor_b32 v75, v75, v7
        v_lshl_add_u32 v75, v75, 4, v74
        v_lshl_add_u32 v{76+q}, v71, 8, v75""")
    for q in range(4):
        a(f"""s_lshl_b32 s46, s5, 3
        s_add_u32 s46, s46, {2*q}
        s_and_b32 s47, s46, 15
        s_and_b32 s46, s46, 16
        v_xor_b32 v75, s47, v7
        v_add_u32 v75, s46, v75
        v_lshl_add_u32 v75, v75, 4, v74
        v_lshl_add_u32 v75, v71, 9, v75
        v_add_u32 v{78+q}, {L_WO}, v75""")
    a(f"""v_and_b32 v75, 1, v3
    v_lshlrev_b32 v75, 1, v75
    v_lshrrev_b32 v82, 1, v5
    v_add_u32 v75, v75, v82
    v_lshlrev_b32 v75, 1, v75
    s_lshl_b32 s46, s5, 1
    v_xor_b32 v75, s46, v75
    v_lshl_add_u32 v75, v75, 4, v74
    v_lshl_add_u32 v75, v71, 7, v75
    v_add_u32 v82, {L_DN}, v75""")
    a(f"""v_lshlrev_b32 v83, 8, v6
    v_lshl_add_u32 v83, v3, 4, v83
    v_add_u32 v83, {L_CL}, v83""")
    ts(a, 1)
    a("s_waitcnt vmcnt(36)")
    ts(a, 2)
    a("""v_max3_f32 v84, v8, v10, v12
    v_max3_f32 v84, v84, v14, v16
    v_max3_f32 v84, v84, v18, v20
    v_max_f32 v84, v84, v22""")
    xg_reduce(a, "v84", "v85", "v_max_f32")
    for i in range(8):
        a(f"v_sub_f32 v{8+2*i}, v{8+2*i}, v84")
    for i in range(8):
        a(f"v_exp_f32 v{8+2*i}, v{8+2*i}")
    a("s_nop 0\nv_mul_f32 v85, v8, v9")
    for i in range(1, 8):
        a(f"v_fmac_f32 v85, v{8+2*i}, v{9+2*i}")
    xg_reduce(a, "v85", "v86", "v_add_f32")
    a("v_rcp_f32 v85, v85\ns_nop 0")
    for i in range(8):
        a(f"v_mul_f32 v{8+2*i}, v{8+2*i}, v85")
    for i in range(8):
        a(f"s_waitcnt vmcnt({35-i})")
        for k in range(4):
            src = 24 + 4 * i + k
            a(f"v_lshlrev_b32 v86, 16, v{src}\nv_and_b32 v87, 0xffff0000, v{src}")
            if i == 0:
                a(f"v_mul_f32 v{88+2*k}, v8, v86\nv_mul_f32 v{89+2*k}, v8, v87")
            else:
                a(f"v_fmac_f32 v{88+2*k}, v{8+2*i}, v86\nv_fmac_f32 v{89+2*k}, v{8+2*i}, v87")
    ts(a, 3)
    for k in range(8):
        xg_reduce(a, f"v{88+k}", "v86", "v_add_f32")
    for k in range(4):
        a(f"v_cvt_pk_bf16_f32 v{88+k}, v{88+2*k}, v{89+2*k}")
    a(f"""s_lshl_b32 s46, s5, 8
    s_add_u32 s46, s46, {L_CL}
    v_lshlrev_b32 v86, 4, v4
    v_add_u32 v86, s46, v86
    ds_write_b128 v86, v[88:91]
    s_waitcnt vmcnt(18) lgkmcnt(0)
    s_barrier""")
    ts(a, 4)
    for t in range(4):
        a(f"ds_read_b128 v[{88+4*t}:{91+4*t}], v83 offset:{64*t}")
    for t in range(4):
        for q in range(2):
            b = 112 + 8 * t + 4 * q
            a(f"ds_read_b64_tr_b16 v[{b}:{b+1}], v{76+q} offset:{8192*t}")
            a(f"ds_read_b64_tr_b16 v[{b+2}:{b+3}], v{76+q} offset:{8192*t+4096}")
    for t in range(4):
        for q in range(2):
            b = 112 + 8 * t + 4 * q
            a(f"s_waitcnt lgkmcnt({14 - 4*t - 2*q})")
            c = "0" if t == 0 else f"v[{104+4*q}:{107+4*q}]"
            a(f"v_mfma_f32_16x16x32_bf16 v[{104+4*q}:{107+4*q}], v[{b}:{b+3}], v[{88+4*t}:{91+4*t}], {c}")
    a(f"""v_lshlrev_b32 v86, 8, v4
    v_lshl_add_u32 v86, v3, 4, v86
    s_lshl_b32 s46, s5, 6
    s_add_u32 s46, s46, {L_CT}
    v_add_u32 v86, s46, v86
    v_cmp_gt_u32 vcc, 4, v4
    s_nop 4
    v_cvt_pk_bf16_f32 v104, v104, v105
    v_cvt_pk_bf16_f32 v105, v106, v107
    v_cvt_pk_bf16_f32 v106, v108, v109
    v_cvt_pk_bf16_f32 v107, v110, v111
    s_and_saveexec_b64 s[48:49], vcc
    ds_write_b128 v86, v[104:107]
    s_mov_b64 exec, s[48:49]
    s_waitcnt vmcnt(0) lgkmcnt(0)
    s_barrier""")
    ts(a, 5)
    a(f"v_add_u32 v83, {L_CT-L_CL}, v83")
    for t in range(4):
        a(f"ds_read_b128 v[{88+4*t}:{91+4*t}], v83 offset:{64*t}")
    for t in range(4):
        for q in range(4):
            b = 112 + 16 * t + 4 * q
            a(f"ds_read_b64_tr_b16 v[{b}:{b+1}], v{78+q} offset:{16384*t}")
            a(f"ds_read_b64_tr_b16 v[{b+2}:{b+3}], v{78+q} offset:{16384*t+8192}")
            if t == 1 and q == 3 or t == 3 and q == 3:
                pass
        a("s_waitcnt lgkmcnt(0)") if t == 0 else None
    for t in range(2):
        b = 176 + 4 * t
        a(f"ds_read_b64_tr_b16 v[{b}:{b+1}], v82 offset:{4096*t}")
        a(f"ds_read_b64_tr_b16 v[{b+2}:{b+3}], v82 offset:{4096*t+2048}")
    a("s_waitcnt lgkmcnt(0)")
    for t in range(4):
        for q in range(4):
            b = 112 + 16 * t + 4 * q
            c = "0" if t == 0 else f"v[{24+4*q}:{27+4*q}]"
            a(f"v_mfma_f32_16x16x32_bf16 v[{24+4*q}:{27+4*q}], v[{b}:{b+3}], v[{88+4*t}:{91+4*t}], {c}")
    for t in range(2):
        c = "0" if t == 0 else "v[40:43]"
        a(f"v_mfma_f32_16x16x32_bf16 v[40:43], v[{176+4*t}:{179+4*t}], v[{56+4*t}:{59+4*t}], {c}")
    a(f"""s_lshl_b32 s46, s7, 3
    s_lshl_b32 s47, s5, 1
    s_add_u32 s46, s46, s47
    s_mul_i32 s46, s46, {SP_ROWS*128}
    s_lshl_b32 s47, s3, 2
    s_add_u32 s47, s47, s6
    s_lshl_b32 s47, s47, 7
    s_add_u32 s46, s46, s47
    s_add_u32 s46, s46, {WS_SP}
    s_add_u32 s47, s46, {SP_ROWS*128}
    s_mov_b32 s50, {16*SP_ROWS*128}
    v_mul_lo_u32 v86, v4, s50
    v_lshl_add_u32 v86, v3, 4, v86""")
    a(f"""s_lshl_b32 s51, s44, 1
    s_lshr_b32 s52, s5, 1
    s_add_u32 s51, s51, s52
    s_mul_i32 s51, s51, {SP_ROWS*128}
    s_add_u32 s52, s45, 128
    s_lshl_b32 s52, s52, 7
    s_add_u32 s51, s51, s52
    s_and_b32 s52, s5, 1
    s_lshl_b32 s52, s52, 6
    s_add_u32 s51, s51, s52
    s_add_u32 s51, s51, {WS_SP}
    v_cmp_gt_u32 vcc, 4, v4
    s_and_saveexec_b64 s[48:49], vcc
    s_nop 4
    buffer_store_dwordx4 v[24:27], v86, s[36:39], s46 offen
    buffer_store_dwordx4 v[28:31], v86, s[36:39], s46 offen offset:64
    buffer_store_dwordx4 v[32:35], v86, s[36:39], s47 offen
    buffer_store_dwordx4 v[36:39], v86, s[36:39], s47 offen offset:64
    s_cmp_ge_u32 s2, 224
    s_cbranch_scc1 K3_FIN
    buffer_store_dwordx4 v[40:43], v86, s[36:39], s51 offen""")
    a.label("K3_FIN")
    ts_fin(a, 2, 6)
    a.label("K3_END")
    a("s_endpgm")
    return a.text(), name, 256, lds, 192


def k4():
    a = A()
    name = NAME + "_kernel"
    header(a, name)
    L_R = 0
    lds = 1024
    a("""s_load_dwordx2 s[8:9], s[0:1], 0
    s_load_dwordx2 s[12:13], s[0:1], 80
    s_load_dwordx2 s[10:11], s[0:1], 96
    s_cmp_ge_u32 s2, 64
    s_cbranch_scc1 K4_END
    v_and_b32 v1, 63, v0
    v_lshrrev_b32 v2, 6, v0
    v_lshrrev_b32 v3, 3, v0
    v_readfirstlane_b32 s5, v2
    v_and_b32 v4, 7, v0            ; chunk
    s_waitcnt lgkmcnt(0)""")
    ts(a, 0)
    srd(a, 20, 8, 9, 4096)
    srd(a, 24, 12, 13, 4096)
    srd(a, 36, 10, 11, WS_BYTES)
    a(f"""s_mul_i32 s6, s2, {SP_ROWS*128}
    s_add_u32 s6, s6, {WS_SP}
    v_lshlrev_b32 v5, 4, v0
    s_add_u32 s7, s6, 8192
    buffer_load_dwordx4 v[8:11], v5, s[36:39], s6 offen
    s_add_u32 s3, s6, 4096
    buffer_load_dwordx4 v[12:15], v5, s[36:39], s3 offen
    buffer_load_dwordx4 v[16:19], v5, s[36:39], s7 offen
    s_add_u32 s3, s7, 4096
    buffer_load_dwordx4 v[20:23], v5, s[36:39], s3 offen
    s_add_u32 s3, s6, 16384
    v_mov_b32 v24, 0
    v_mov_b32 v25, 0
    v_mov_b32 v26, 0
    v_mov_b32 v27, 0
    v_cmp_gt_u32 vcc, 28, v3
    s_and_saveexec_b64 s[48:49], vcc
    buffer_load_dwordx4 v[24:27], v5, s[36:39], s3 offen
    s_mov_b64 exec, s[48:49]
    s_lshl_b32 s3, s2, 6
    v_lshlrev_b32 v6, 1, v0
    buffer_load_ushort v28, v6, s[20:23], s3 offen
    s_waitcnt vmcnt(2)""")
    for i in range(4):
        a(f"v_add_f32 v{8+i}, v{8+i}, v{12+i}\nv_add_f32 v{16+i}, v{16+i}, v{20+i}\nv_add_f32 v{8+i}, v{8+i}, v{16+i}")
    a("s_waitcnt vmcnt(1)")
    ts(a, 1)
    for r in list(range(8, 12)) + list(range(24, 28)):
        a(f"s_nop 1\nv_add_f32_dpp v{r}, v{r}, v{r} row_ror:8 row_mask:0xf bank_mask:0xf")
        xg_reduce(a, f"v{r}", "v29", "v_add_f32")
    a(f"""s_lshl_b32 s6, s5, 8
    v_lshlrev_b32 v30, 4, v4
    v_add_u32 v30, s6, v30
    v_cmp_gt_u32 vcc, 8, v1
    s_and_saveexec_b64 s[48:49], vcc
    ds_write_b128 v30, v[8:11]
    ds_write_b128 v30, v[24:27] offset:128
    s_mov_b64 exec, s[48:49]
    s_waitcnt lgkmcnt(0)
    s_barrier
    v_cmp_gt_u32 vcc, 32, v0
    s_and_saveexec_b64 s[48:49], vcc
    s_cbranch_execz K4_FIN
    v_lshlrev_b32 v30, 2, v0""")
    for w in range(4):
        a(f"ds_read_b32 v{8+w}, v30 offset:{256*w}\nds_read_b32 v{12+w}, v30 offset:{256*w+128}")
    a(f"""s_waitcnt lgkmcnt(0)
    v_add_f32 v8, v8, v9
    v_add_f32 v10, v10, v11
    v_add_f32 v8, v8, v10           ; s
    v_add_f32 v12, v12, v13
    v_add_f32 v14, v14, v15
    v_add_f32 v12, v12, v14         ; ffn
    v_mul_f32 v13, {f2u(-LOG2E):#x}, v12
    v_exp_f32 v13, v13
    s_nop 0
    v_add_f32 v13, 1.0, v13
    v_rcp_f32 v13, v13
    s_nop 0
    v_mul_f32 v12, v12, v13         ; silu(ffn)
    s_waitcnt vmcnt(0)
    v_lshlrev_b32 v28, 16, v28
    v_fmac_f32 v28, v8, v12
    v_cvt_pk_bf16_f32 v28, v28, v28
    buffer_store_short v28, v6, s[24:27], s3 offen""")
    a.label("K4_FIN")
    ts_fin(a, 3, 2)
    a.label("K4_END")
    a("s_endpgm")
    return a.text(), name, 64, lds, 32


def main():
    ref = open(f"cdna_kernels/{NAME}.s.ref").read()
    head = []
    for line in ref.split("\n"):
        if line.startswith("; @launch") or line.startswith("; Override") or line.startswith("; grid="):
            continue
        if line.startswith(";"):
            head.append(line)
        else:
            break
    ks = [k1(), k2(), k3(), k4()]
    out = "\n".join(head) + "\n"
    for txt, name, grid, lds, vg in ks:
        out += f"; @launch kernel={name} grid=({grid},1,1) block=(256,1,1) lds={lds}\n"
    out += '.amdgcn_target "amdgcn-amd-amdhsa--gfx950"\n.text\n'
    for txt, name, grid, lds, vg in ks:
        out += txt
    out += '.section .rodata,"a"\n'
    for txt, name, grid, lds, vg in ks:
        out += kd(name, 256 if TS else vg)
    dst = sys.argv[1] if len(sys.argv) > 1 else f"cdna_kernels/{NAME}.s"
    open(dst, "w").write(out)
    print("wrote", dst, len(out))


if __name__ == "__main__":
    main()
```

```python
import sys
import os
import struct

NAME = "recurrent_scan__compressed_kv_cla__swiglu_ffn__decode"

WS_QL = 0x000000
WS_GU = 0x040000
WS_STATS = 0x090000
WS_SP = 0x100000
WS_PART = 0x400000
WS_TS = 0x8000000
WS_BYTES = 0x10000000
SP_ROWS = 156

QSCALE = (128 ** -0.5) * 1.4426950408889634
LOG2E = 1.4426950408889634
DIAG = bool(os.environ.get("DIAG"))
TS = bool(os.environ.get("TS")) or DIAG
SPIN_MAX = 40000
P2A = int(os.environ.get("P2A", "8"))


def f2u(x):
    return struct.unpack("<I", struct.pack("<f", x))[0]


class A:
    def __init__(self):
        self.l = []
        self.vm = []

    def __call__(self, s):
        for line in s.strip("\n").split("\n"):
            line = line.strip()
            if line:
                self.l.append("    " + line)

    def label(self, s):
        self.l.append(s + ":")

    def raw(self, s):
        self.l.append(s)

    def text(self):
        return "\n".join(self.l) + "\n"

    def vmop(self, s, tag):
        self(s)
        self.vm.append(tag)

    def wait_vm(self, *tags, extra=""):
        last = max(i for i, t in enumerate(self.vm) if t in tags)
        n = len(self.vm) - 1 - last
        assert n <= 63, n
        self(f"s_waitcnt vmcnt({n}) {extra}")


def srd(a, d, lo, nbytes):
    a(f"""s_mov_b32 s{d}, s{lo}
    s_mov_b32 s{d+1}, s{lo+1}
    s_mov_b32 s{d+2}, {nbytes}
    s_mov_b32 s{d+3}, 0x00020000""")


def ts(a, p):
    if TS:
        a(f"s_memrealtime s[{64+2*p}:{65+2*p}]")


def xg_reduce(a, v, t, op):
    a(f"""v_mov_b32 {t}, {v}
    s_nop 1
    v_permlane16_swap_b32 {v}, {t}
    s_nop 1
    {op} {v}, {v}, {t}
    v_mov_b32 {t}, {v}
    s_nop 1
    v_permlane32_swap_b32 {v}, {t}
    s_nop 1
    {op} {v}, {v}, {t}""")


def wave_sum(a, v, t):
    for r in (8, 4, 2, 1):
        a(f"s_nop 1\nv_add_f32_dpp {v}, {v}, {v} row_ror:{r} row_mask:0xf bank_mask:0xf")
    xg_reduce(a, v, t, "v_add_f32")


sX, sCKV, sWQ, sWUK, sWUV, sWO, sFF, sWS, sDN, sOUT, sDBG = 8, 12, 16, 20, 24, 28, 32, 36, 40, 44, 48


def R(d):
    return f"s[{d}:{d+3}]"


def fused():
    a = A()
    name = NAME + "_kernel"
    a.raw(f".globl {name}")
    a.raw(".p2align 8")
    a.raw(f".type {name},@function")
    a.label(name)
    L_QL = 131072
    L_P = L_QL + 16384
    L_Q = L_P
    L_X = L_P + 4096
    L_MX, L_LS, L_CL, L_CT, L_H1 = L_X, L_X + 256, L_X + 1024, L_X + 2048, L_X + 3072
    L_DN = L_X + 4096
    lds = L_DN + 8192
    WQ_OFF, FF_OFF = 12288, 28672
    L_UV, L_WO = 0, 32768
    if TS:
        a("s_getpc_b64 s[100:101]")
    a("""s_load_dwordx16 s[64:79], s[0:1], 0
    s_load_dwordx8 s[80:87], s[0:1], 64
    s_load_dwordx2 s[88:89], s[0:1], 96
    s_cmp_ge_u32 s2, 256
    s_cbranch_scc1 K_END
    v_and_b32 v1, 63, v0
    v_lshrrev_b32 v2, 6, v0
    s_and_b32 s3, s2, 7
    v_readfirstlane_b32 s5, v2
    s_lshr_b32 s6, s2, 3
    s_and_b32 s7, s6, 3
    s_lshl_b32 s7, s7, 3
    s_or_b32 s3, s3, s7            ; h
    s_lshr_b32 s4, s2, 5           ; j
    s_and_b32 s52, s4, 1           ; dh
    s_lshr_b32 s53, s4, 1          ; cs
    s_min_u32 s6, s2, 223
    s_and_b32 s54, s6, 3           ; ks
    s_lshr_b32 s7, s6, 2           ; cb 0..55
    s_cmp_ge_u32 s7, 28
    s_cselect_b32 s56, 1, 0        ; mat
    s_mul_i32 s55, s56, 28
    s_sub_u32 s55, s7, s55         ; cbk
    s_lshr_b32 s59, s6, 3          ; fs 0..27
    s_and_b32 s60, s6, 7           ; ms 0..7
    s_lshr_b32 s6, s2, 3
    s_and_b32 s58, s6, 1           ; hg
    s_lshr_b32 s6, s2, 4
    s_lshl_b32 s6, s6, 3
    s_and_b32 s57, s2, 7
    s_or_b32 s57, s57, s6          ; T 0..127
    v_lshrrev_b32 v3, 4, v1        ; g
    v_and_b32 v4, 15, v1           ; i16
    v_bfe_u32 v5, v1, 2, 2         ; r
    v_and_b32 v6, 3, v1            ; c'
    v_lshlrev_b32 v31, 4, v1       ; l*16
    s_waitcnt lgkmcnt(0)""")
    srd(a, sX, 64, 4096)
    srd(a, sWQ, 68, 4194304)
    a("""s_cmp_eq_u32 s56, 1
    s_cselect_b32 s78, s80, s78
    s_cselect_b32 s79, s81, s79""")
    srd(a, sFF, 78, 1835008)
    srd(a, sWUK, 70, 4194304)
    srd(a, sWS, 88, WS_BYTES)
    srd(a, sDN, 82, 1835008)
    srd(a, sCKV, 66, 16777216)
    srd(a, sWUV, 72, 4194304)
    srd(a, sWO, 74, 4194304)
    srd(a, sOUT, 84, 4096)
    srd(a, sDBG, 86, 256)
    ts(a, 0)
    a("s_lshl_b32 s6, s5, 10")
    a.vmop(f"buffer_load_dwordx4 v[8:11], v31, {R(sX)}, s6 offen", "x")
    a(f"""v_lshrrev_b32 v7, 3, v1        ; l>>3
    v_and_b32 v2, 7, v1
    v_lshlrev_b32 v28, 1, v3
    v_xor_b32 v2, v2, v28
    v_lshlrev_b32 v2, 4, v2
    v_lshl_add_u32 v29, v7, 13, v2 ; w_q voff
    s_movk_i32 s6, 3584
    v_mul_lo_u32 v28, v7, s6
    v_add_u32 v28, v28, v2
    v_lshl_add_u32 v30, v7, 10, v2
    s_lshl_b32 s6, s5, 20
    s_lshl_b32 s7, s3, 8
    s_add_u32 s6, s6, s7
    s_lshl_b32 s7, s52, 7
    s_add_u32 s6, s6, s7
    s_lshl_b32 s7, s5, 15
    s_add_u32 m0, s7, {WQ_OFF}""")
    for i in range(16):
        a.vmop(f"s_nop 0\nbuffer_load_dwordx4 v29, {R(sWQ)}, s6 offen lds", "wq")
        if i < 15:
            a(f"s_add_u32 s6, s6, {8*8192}\ns_add_u32 m0, m0, 1024")
    a(f"""s_lshl_b32 s6, s54, 7
    s_lshl_b32 s7, s5, 5
    s_add_u32 s6, s6, s7
    s_mul_i32 s6, s6, 3584
    s_lshl_b32 s7, s55, 7
    s_add_u32 s6, s6, s7
    s_lshl_b32 s7, s5, 15
    s_add_u32 m0, s7, {FF_OFF}""")
    for i in range(4):
        a.vmop(f"s_nop 0\nbuffer_load_dwordx4 v28, {R(sFF)}, s6 offen lds", "ff")
        if i < 3:
            a(f"s_add_u32 s6, s6, {8*3584}\ns_add_u32 m0, m0, 1024")
    a(f"""v_lshrrev_b32 v7, 2, v4
    v_and_b32 v2, 3, v4
    v_lshl_add_u32 v7, v7, 3, v2
    v_lshlrev_b32 v7, 13, v7
    v_lshl_add_u32 v7, v3, 4, v7
    s_lshl_b32 s6, s53, 7
    s_lshl_b32 s7, s5, 5
    s_add_u32 s6, s6, s7
    s_lshl_b32 s6, s6, 13
    s_lshl_b32 s7, s3, 8
    s_add_u32 s6, s6, s7
    s_lshl_b32 s7, s52, 7
    s_add_u32 s6, s6, s7
    s_add_u32 s7, s6, 32768""")
    for q in range(2):
        for t in range(2):
            b = 12 + 8 * q + 4 * t
            a.vmop(f"buffer_load_dwordx4 v[{b}:{b+3}], v7, {R(sWUK)}, s{6+q} offen offset:{64*t}", "wuk")
    a(f"""v_mov_b32 v40, -1
    v_mov_b32 v41, -1
    v_mov_b32 v42, -1
    v_mov_b32 v43, -1
    v_lshlrev_b32 v7, 4, v0        ; tid*16
    s_lshl_b32 s6, s3, 2
    s_and_b32 s7, s4, 3
    s_add_u32 s6, s6, s7           ; h*4+cj
    s_lshl_b32 s6, s6, 15
    s_lshr_b32 s7, s4, 2
    s_lshl_b32 s7, s7, 14
    s_add_u32 s6, s6, s7
    s_add_u32 s6, s6, {WS_PART}""")
    for i in range(4):
        a.vmop(f"buffer_store_dwordx4 v[40:43], v7, {R(sWS)}, s6 offen sc1", "rst")
        if i < 3:
            a("s_add_u32 s6, s6, 4096")
    a(f"""s_mul_i32 s6, s2, 4992
    s_mul_i32 s7, s5, 1248
    s_add_u32 s6, s6, s7
    s_add_u32 s6, s6, {WS_SP}""")
    a.vmop(f"buffer_store_dwordx4 v[40:43], v31, {R(sWS)}, s6 offen sc1", "rst")
    a("""v_cmp_gt_u32 vcc, 14, v1
    s_and_saveexec_b64 s[62:63], vcc""")
    a.vmop(f"buffer_store_dwordx4 v[40:43], v31, {R(sWS)}, s6 offen offset:1024 sc1", "rst")
    a(f"""s_lshl_b32 s6, s3, 10
    s_lshl_b32 s7, s4, 7
    s_add_u32 s6, s6, s7
    s_lshl_b32 s7, s5, 5
    s_add_u32 s6, s6, s7
    s_add_u32 s6, s6, {WS_STATS}
    v_cmp_gt_u32 vcc, 2, v1
    s_and_b64 exec, exec, vcc""")
    a.vmop(f"buffer_store_dwordx4 v[40:43], v31, {R(sWS)}, s6 offen sc1", "rst")
    a("s_mov_b64 exec, s[62:63]")
    a(f"""s_lshl_b32 s6, s59, 6
    s_lshl_b32 s7, s5, 4
    s_add_u32 s6, s6, s7
    s_lshl_b32 s6, s6, 10
    s_lshl_b32 s7, s60, 7
    s_add_u32 s6, s6, s7
    s_lshl_b32 s7, s5, 11
    s_add_u32 m0, s7, {L_DN}""")
    a.vmop(f"s_nop 0\nbuffer_load_dwordx4 v30, {R(sDN)}, s6 offen lds", "dn")
    a("s_add_u32 s6, s6, 8192\ns_add_u32 m0, m0, 1024")
    a.vmop(f"s_nop 0\nbuffer_load_dwordx4 v30, {R(sDN)}, s6 offen lds", "dn")
    for k in range(8):
        a(f"v_xor_b32 v{32+k}, {k << 5}, v31")
    a("""s_lshl_b32 s61, s57, 17
    s_lshl_b32 s7, s5, 15
    s_add_u32 s61, s61, s7
    s_mov_b32 m0, s7""")

    def ckv_dma(k0, k1):
        for i in range(k0, k1):
            if i % 4 == 0 or i == k0:
                a(f"s_lshl_b32 s7, s5, 15\ns_add_u32 m0, s7, {4096*(i//4)}\ns_add_u32 s6, s61, {4096*(i//4)}")
            a.vmop(f"buffer_load_dwordx4 v{32 + (i & 7)}, {R(sCKV)}, s6 offen offset:{1024*(i&3)} lds", "ckv")
    ckv_dma(0, 12)
    ts(a, 1)
    a(f"""v_lshl_add_u32 v2, v3, 2, v5   ; rowl
    v_and_b32 v7, 1, v6
    v_lshrrev_b32 v44, 1, v6
    v_lshlrev_b32 v7, 3, v7
    v_lshl_add_u32 v56, v44, 4, v7 ; cc
    v_and_b32 v7, 1, v3
    v_lshlrev_b32 v7, 1, v7
    v_lshrrev_b32 v44, 1, v5
    v_add_u32 v7, v7, v44
    v_lshlrev_b32 v7, 1, v7        ; f3
    s_lshl_b32 s6, s5, 1
    v_xor_b32 v7, s6, v7
    v_lshl_add_u32 v7, v7, 4, v56
    v_lshl_add_u32 v44, v2, 7, v7
    v_add_u32 v47, 0x10000, v44
    v_add_u32 v57, {L_DN}, v44
    v_lshlrev_b32 v45, 10, v6
    v_lshl_add_u32 v45, v3, 4, v45
    v_add_u32 v45, {L_X}, v45
    v_lshrrev_b32 v46, 2, v1
    v_lshlrev_b32 v46, 6, v46
    v_and_b32 v7, 1, v6
    v_lshl_add_u32 v46, v7, 5, v46
    v_lshrrev_b32 v7, 1, v6
    v_lshl_add_u32 v46, v7, 3, v46
    s_lshl_b32 s6, s5, 10
    s_add_u32 s6, s6, {L_X}
    v_add_u32 v46, s6, v46""")
    a.wait_vm("x")
    ts(a, 2)
    for i in range(4):
        a(f"v_lshlrev_b32 v{48+2*i}, 16, v{8+i}\nv_and_b32 v{49+2*i}, 0xffff0000, v{8+i}")
    a("""v_add_f32 v58, v48, v49
    v_add_f32 v59, v50, v51
    v_add_f32 v60, v52, v53
    v_add_f32 v61, v54, v55
    v_add_f32 v58, v58, v59
    v_add_f32 v60, v60, v61
    v_add_f32 v58, v58, v60""")
    wave_sum(a, "v58", "v59")
    a(f"v_mul_f32 v58, {f2u(1.0/512):#x}, v58")
    for i in range(8):
        a(f"v_sub_f32 v{48+i}, v{48+i}, v58")
    a("v_mul_f32 v59, v48, v48")
    for i in range(1, 8):
        a(f"v_fmac_f32 v59, v{48+i}, v{48+i}")
    wave_sum(a, "v59", "v60")
    a(f"""v_mov_b32 v60, {f2u(1e-5):#x}
    v_fmac_f32 v60, {f2u(1.0/512):#x}, v59
    v_rsq_f32 v60, v60
    s_nop 0""")
    for i in range(8):
        a(f"v_mul_f32 v{48+i}, v{48+i}, v60")
    for i in range(4):
        a(f"v_cvt_pk_bf16_f32 v{60+i}, v{48+2*i}, v{49+2*i}")
    a("""ds_write_b64 v46, v[60:61]
    ds_write_b64 v46, v[62:63] offset:16""")
    a.wait_vm("wq", "ff", extra="lgkmcnt(0)")
    a("s_barrier")
    ts(a, 3)
    a("s_lshl_b32 s6, s54, 8\nv_add_u32 v58, s6, v45")
    for t in range(4):
        a(f"ds_read_b128 v[{200+4*t}:{203+4*t}], v58 offset:{64*t}")
        rb = "v44" if t < 2 else "v47"
        off = FF_OFF + 32768 * (t & 1)
        a(f"ds_read_b64_tr_b16 v[{216+4*t}:{217+4*t}], {rb} offset:{off}")
        a(f"ds_read_b64_tr_b16 v[{218+4*t}:{219+4*t}], {rb} offset:{off+2048}")

    def q_reads(t):
        a(f"ds_read_b128 v[{64+4*t}:{67+4*t}], v45 offset:{64*t}")
        rb = "v44" if t < 8 else "v47"
        off = WQ_OFF + 32768 * ((t >> 2) & 1) + 4096 * (t & 3)
        a(f"ds_read_b64_tr_b16 v[{128+4*t}:{129+4*t}], {rb} offset:{off}")
        a(f"ds_read_b64_tr_b16 v[{130+4*t}:{131+4*t}], {rb} offset:{off+2048}")
    q_reads(0)
    for t in range(4):
        a(f"s_waitcnt lgkmcnt({3*(3-t)+3})")
        c = "0" if t == 0 else "v[232:235]"
        a(f"v_mfma_f32_16x16x32_bf16 v[232:235], v[{216+4*t}:{219+4*t}], v[{200+4*t}:{203+4*t}], {c}")
    for t in range(1, 5):
        q_reads(t)
    for t in range(16):
        ahead = min(4, 15 - t)
        a(f"s_waitcnt lgkmcnt({3*ahead})")
        acc = 192 + 4 * (t & 1)
        c = "0" if t < 2 else f"v[{acc}:{acc+3}]"
        a(f"v_mfma_f32_16x16x32_bf16 v[{acc}:{acc+3}], v[{128+4*t}:{131+4*t}], v[{64+4*t}:{67+4*t}], {c}")
        if t + 5 < 16:
            q_reads(t + 5)
    a(f"""s_lshl_b32 s6, s54, 1
    s_add_u32 s6, s6, s56
    s_mul_i32 s6, s6, {4*7168}
    s_lshl_b32 s7, s55, 8
    s_add_u32 s6, s6, s7
    s_lshl_b32 s7, s5, 6
    s_add_u32 s6, s6, s7
    s_add_u32 s6, s6, {WS_GU}
    s_movk_i32 s7, 7168
    v_mul_lo_u32 v58, v4, s7
    v_lshl_add_u32 v58, v3, 4, v58
    v_lshlrev_b32 v59, 7, v4
    v_lshl_add_u32 v59, v3, 3, v59
    s_lshl_b32 s7, s5, 5
    s_add_u32 s7, s7, {L_Q}
    v_add_u32 v59, s7, v59
    v_cmp_gt_u32 vcc, 4, v4
    s_and_saveexec_b64 s[62:63], vcc""")
    a.vmop(f"buffer_store_dwordx4 v[232:235], v58, {R(sWS)}, s6 offen sc1", "gu")
    a(f"""s_nop 4
    v_add_f32 v192, v192, v196
    v_add_f32 v193, v193, v197
    v_add_f32 v194, v194, v198
    v_add_f32 v195, v195, v199
    v_cvt_pk_bf16_f32 v192, v192, v193
    v_cvt_pk_bf16_f32 v193, v194, v195
    ds_write_b64 v59, v[192:193]
    s_mov_b64 exec, s[62:63]
    v_lshlrev_b32 v59, 7, v6
    v_lshl_add_u32 v59, v3, 4, v59
    v_add_u32 v59, {L_Q}, v59
    s_waitcnt lgkmcnt(0)
    s_barrier""")
    ts(a, 4)
    a("""ds_read_b128 v[64:67], v59
    ds_read_b128 v[68:71], v59 offset:64""")
    a(f"""s_lshl_b32 s6, s52, 17
    s_lshr_b32 s7, s3, 4
    s_lshl_b32 s7, s7, 14
    s_add_u32 s6, s6, s7
    s_lshl_b32 s7, s53, 2
    s_add_u32 s7, s7, s5
    s_lshl_b32 s7, s7, 10
    s_add_u32 s6, s6, s7
    s_and_b32 s7, s3, 15
    s_lshl_b32 s7, s7, 4
    s_add_u32 s6, s6, s7
    s_add_u32 s6, s6, {WS_QL}
    v_lshlrev_b32 v58, 15, v4
    v_lshl_add_u32 v58, v3, 8, v58
    s_mov_b32 s7, {f2u(QSCALE):#x}""")
    a.wait_vm("wuk", extra="lgkmcnt(0)")
    for t in range(2):
        for q in range(2):
            b = 12 + 8 * q + 4 * t
            c = "0" if t == 0 else f"v[{72+4*q}:{75+4*q}]"
            a(f"v_mfma_f32_16x16x32_bf16 v[{72+4*q}:{75+4*q}], v[{b}:{b+3}], v[{64+4*t}:{67+4*t}], {c}")
    a("""v_cmp_gt_u32 vcc, 4, v4
    s_and_saveexec_b64 s[62:63], vcc
    s_nop 7""")
    for i in range(8):
        a(f"v_mul_f32 v{72+i}, s7, v{72+i}")
    for i in range(4):
        a(f"v_cvt_pk_bf16_f32 v{72+i}, v{72+2*i}, v{73+2*i}")
    a.vmop(f"buffer_store_dwordx4 v[72:75], v58, {R(sWS)}, s6 offen sc1", "ql")
    a("s_mov_b64 exec, s[62:63]")
    ts(a, 5)
    ckv_dma(12, 12 + P2A)
    a.wait_vm("ql", "gu", "rst")
    a(f"""s_barrier
    s_cmp_lg_u32 s5, 0
    s_cbranch_scc1 NOSIG1
    v_mov_b32 v58, s2
    v_mov_b32 v59, 1
    v_cmp_eq_u32 vcc, 0, v1
    s_and_saveexec_b64 s[62:63], vcc
    buffer_store_byte v59, v58, {R(sDBG)}, 0 offen sc1
    s_mov_b64 exec, s[62:63]""")
    a.label("NOSIG1")
    ts(a, 6)
    ckv_dma(12 + P2A, 32)
    a("""v_and_b32 v7, 7, v4
    v_lshlrev_b32 v7, 1, v7
    s_lshl_b32 s6, s5, 5
    v_add_u32 v58, s6, v4
    v_lshlrev_b32 v58, 10, v58""")
    for tq in range(4):
        a(f"v_add_u32 v59, {4*tq}, v3\nv_xor_b32 v59, v59, v7\nv_lshl_add_u32 v{24+tq}, v59, 4, v58")
    a(f"v_add_u32 v28, {L_QL}, v31")
    a("""v_and_b32 v7, 1, v3
    v_lshl_add_u32 v7, v7, 2, v5
    v_lshlrev_b32 v7, 1, v7
    v_lshl_add_u32 v58, v2, 10, v56
    s_lshl_b32 s6, s5, 8
    v_add_u32 v58, s6, v58""")
    for n in range(8):
        a(f"v_xor_b32 v59, {2*n}, v7\nv_lshl_add_u32 v{32+n}, v59, 4, v58\nv_add_u32 v{8+n}, 0x10000, v{32+n}")
    a(f"""s_cmp_lg_u32 s5, 0
    s_cbranch_scc1 E1_DONE
    v_lshlrev_b32 v58, 2, v1
    s_mov_b32 s7, 0x01010101
    s_mov_b32 s6, {SPIN_MAX}""")
    a.label("E1_POLL")
    a(f"""buffer_load_dword v59, v58, {R(sDBG)}, 0 offen sc1
    s_waitcnt vmcnt(0)
    v_cmp_ne_u32 vcc, s7, v59
    s_cbranch_vccz E1_DONE
    s_sub_u32 s6, s6, 1
    s_cmp_eq_u32 s6, 0
    s_cbranch_scc1 E1_DONE
    s_sleep 1
    s_branch E1_POLL""")
    a.label("E1_DONE")
    a("s_barrier")
    ts(a, 7)
    a.vm = ["ckv"]
    a(f"""s_lshr_b32 s6, s57, 5          ; b
    s_lshl_b32 s6, s6, 1
    s_add_u32 s6, s6, s58
    s_lshl_b32 s6, s6, 14
    s_lshl_b32 s7, s5, 12
    s_add_u32 s6, s6, s7
    s_add_u32 s6, s6, {WS_QL}
    s_add_u32 s7, s6, 131072""")
    for dh in range(2):
        for tt in range(4):
            b = 128 + 16 * dh + 4 * tt
            a.vmop(f"buffer_load_dwordx4 v[{b}:{b+3}], v31, {R(sWS)}, s{6+dh} offen offset:{1024*tt} sc1", "qlr")
    a(f"""s_mul_i32 s6, s5, 7168
    s_lshl_b32 s7, s59, 8
    s_add_u32 s6, s6, s7
    s_add_u32 s6, s6, {WS_GU}
    v_lshlrev_b32 v58, 2, v1""")
    for km in range(8):
        a.vmop(f"buffer_load_dword v{160+km}, v58, {R(sWS)}, s6 offen sc1", "gur")
        if km < 7:
            a(f"s_add_u32 s6, s6, {4*7168}")
    a("""v_lshlrev_b32 v58, 1, v3
    v_xor_b32 v58, v58, v4
    v_lshlrev_b32 v58, 4, v58
    v_lshl_add_u32 v58, v3, 13, v58
    v_xor_b32 v59, 0x80, v58
    s_and_b32 s6, s4, 3
    s_lshl_b32 s6, s6, 7
    s_lshl_b32 s7, s5, 5
    s_add_u32 s6, s6, s7
    s_lshl_b32 s6, s6, 13
    s_lshl_b32 s7, s3, 8
    s_add_u32 s6, s6, s7""")
    for i in range(8):
        a.vmop(f"buffer_load_dwordx4 a[{4*i}:{4*i+3}], v{58+(i&1)}, {R(sWUV)}, s6 offen", "wuv")
        if i < 7:
            a(f"s_add_u32 s6, s6, {4*8192}")
    a("""v_lshrrev_b32 v58, 5, v1
    v_and_b32 v59, 31, v1""")
    for q in range(4):
        a(f"""v_add_u32 v60, {2*q}, v58
        v_lshlrev_b32 v60, 1, v60
        v_xor_b32 v60, v60, v59
        v_lshlrev_b32 v60, 4, v60
        v_lshl_add_u32 v{168+q}, v58, 10, v60""")
    a("""s_lshl_b32 s6, s3, 17
    s_lshl_b32 s7, s5, 15
    s_add_u32 s6, s6, s7
    s_lshr_b32 s7, s4, 2
    s_lshl_b32 s7, s7, 9
    s_add_u32 s6, s6, s7""")
    for i in range(16):
        a.vmop(f"buffer_load_dwordx4 a[{32+4*i}:{35+4*i}], v{168+(i&3)}, {R(sWO)}, s6 offen", "wo")
        if i < 15:
            a("s_add_u32 s6, s6, 2048")
    a(f"""s_lshl_b32 s6, s5, 12
    v_add_u32 v58, s6, v28""")
    a.wait_vm("qlr")
    for tt in range(4):
        for k in range(4):
            x, y, o = 128 + 4 * tt + k, 144 + 4 * tt + k, 64 + 4 * tt + k
            a(f"""v_lshlrev_b32 v59, 16, v{x}
            v_lshlrev_b32 v60, 16, v{y}
            v_and_b32 v61, 0xffff0000, v{x}
            v_and_b32 v62, 0xffff0000, v{y}
            v_add_f32 v59, v59, v60
            v_add_f32 v61, v61, v62
            v_cvt_pk_bf16_f32 v{o}, v59, v61""")
        a(f"ds_write_b128 v58, v[{64+4*tt}:{67+4*tt}] offset:{1024*tt}")
    a("s_waitcnt lgkmcnt(0)\ns_barrier")
    ts(a, 8)
    for t in range(16):
        a(f"ds_read_b128 v[{64+4*t}:{67+4*t}], v28 offset:{1024*t}")
    a.wait_vm("gur")
    a(f"""v_add_f32 v160, v160, v162
    v_add_f32 v164, v164, v166
    v_add_f32 v161, v161, v163
    v_add_f32 v165, v165, v167
    v_add_f32 v160, v160, v164
    v_add_f32 v161, v161, v165
    v_mul_f32 v162, {f2u(-LOG2E):#x}, v160
    v_exp_f32 v162, v162
    v_and_b32 v163, 32, v1
    v_lshl_add_u32 v163, v5, 3, v163
    v_add_f32 v162, 1.0, v162
    v_rcp_f32 v162, v162
    v_bfe_u32 v164, v1, 4, 1
    v_lshl_add_u32 v163, v164, 2, v163
    v_add_u32 v163, v163, v6
    v_mul_f32 v160, v160, v162
    v_mul_f32 v160, v160, v161
    v_cvt_pk_bf16_f32 v160, v160, v160
    v_lshlrev_b32 v163, 1, v163
    s_lshl_b32 s6, s5, 7
    s_add_u32 s6, s6, {L_H1}
    v_add_u32 v163, s6, v163
    ds_write_b16 v163, v160""")
    for kb in range(2):
        for t in range(16):
            a(f"ds_read_b128 v[{128+4*t}:{131+4*t}], v{24+(t&3)} offset:{(t>>2)*256+kb*16384}")
        for t in range(16):
            a(f"s_waitcnt lgkmcnt({15-t})")
            c = "0" if t == 0 else f"v[{48+4*kb}:{51+4*kb}]"
            a(f"v_mfma_f32_16x16x32_bf16 v[{48+4*kb}:{51+4*kb}], v[{128+4*t}:{131+4*t}], v[{64+4*t}:{67+4*t}], {c}")
    ts(a, 9)
    a(f"""v_lshlrev_b32 v58, 4, v4       ; head*16
    s_lshl_b32 s6, s5, 2
    s_add_u32 s6, s6, {L_MX}
    v_add_u32 v59, s6, v58         ; MX[head][w]
    v_add_u32 v58, {L_MX}, v58
    s_nop 4
    v_max3_f32 v60, v48, v49, v50
    v_max3_f32 v60, v60, v51, v52
    v_max3_f32 v60, v60, v53, v54
    v_max_f32 v60, v60, v55""")
    xg_reduce(a, "v60", "v61", "v_max_f32")
    a(f"""ds_write_b32 v59, v60
    s_waitcnt lgkmcnt(0)
    s_barrier
    ds_read_b128 v[128:131], v58
    s_waitcnt lgkmcnt(0)
    v_max3_f32 v60, v128, v129, v130
    v_max_f32 v60, v60, v131        ; m""")
    for i in range(8):
        a(f"v_sub_f32 v{48+i}, v{48+i}, v60")
    for i in range(8):
        a(f"v_exp_f32 v{48+i}, v{48+i}")
    a("""s_nop 0
    v_add_f32 v61, v48, v49
    v_add_f32 v62, v50, v51
    v_add_f32 v63, v52, v53
    v_add_f32 v128, v54, v55
    v_add_f32 v61, v61, v62
    v_add_f32 v63, v63, v128
    v_add_f32 v61, v61, v63""")
    for i in range(4):
        a(f"v_cvt_pk_bf16_f32 v{48+i}, v{48+2*i}, v{49+2*i}")
    a(f"""s_lshl_b32 s6, s5, 10
    s_add_u32 s6, s6, {L_P}
    v_add_u32 v62, s6, v31
    ds_write_b128 v62, v[48:51]""")
    xg_reduce(a, "v61", "v63", "v_add_f32")
    a(f"""ds_write_b32 v59, v61 offset:{L_LS-L_MX}
    v_add_u32 v62, {L_P}, v31
    s_waitcnt lgkmcnt(0)
    s_barrier""")
    for u in range(4):
        a(f"ds_read_b128 v[{64+4*u}:{67+4*u}], v62 offset:{1024*u}")
    a(f"ds_read_b128 v[52:55], v58 offset:{L_LS-L_MX}")
    ts(a, 10)

    def pv_reads(u):
        base = 128 + 32 * (u & 1)
        ab = 32 if u < 2 else 8
        off = (u & 1) * 32768
        for n in range(8):
            a(f"ds_read_b64_tr_b16 v[{base+4*n}:{base+4*n+1}], v{ab+n} offset:{off}")
            a(f"ds_read_b64_tr_b16 v[{base+4*n+2}:{base+4*n+3}], v{ab+n} offset:{off+16384}")
    pv_reads(0)
    for u in range(4):
        if u < 3:
            pv_reads(u + 1)
        base = 128 + 32 * (u & 1)
        for n in range(8):
            rem = (16 if u < 3 else 0) + 14 - 2 * n
            a(f"s_waitcnt lgkmcnt({min(rem, 15)})")
            c = "0" if u == 0 else f"v[{80+4*n}:{83+4*n}]"
            a(f"v_mfma_f32_16x16x32_bf16 v[{80+4*n}:{83+4*n}], v[{base+4*n}:{base+4*n+3}], v[{64+4*u}:{67+4*u}], {c}")
    ts(a, 11)
    a("s_barrier")
    a(f"""v_add_f32 v52, v52, v53
    v_add_f32 v54, v54, v55
    v_add_f32 v61, v52, v54         ; L
    s_mov_b32 s61, 0xfffffffe
    s_lshr_b32 s7, s57, 5           ; b
    s_lshl_b32 s6, s58, 6
    s_add_u32 s6, s6, s7            ; (hg*16)*4 + b
    s_lshl_b32 s6, s6, 2
    s_and_b32 s7, s57, 3
    s_add_u32 s6, s6, s7
    s_lshl_b32 s6, s6, 3
    s_bfe_u32 s7, s57, 0x30002      ; (T>>2)&7 = s>>2
    s_add_u32 s6, s6, s7
    s_lshl_b32 s6, s6, 3
    s_add_u32 s6, s6, {WS_STATS}
    v_lshlrev_b32 v58, 10, v4       ; head * 1024
    v_min_u32 v60, s61, v60
    v_min_u32 v61, s61, v61""")
    a(f"""s_lshl_b32 s7, s58, 6
    s_add_u32 s7, s7, s5
    s_lshl_b32 s7, s7, 7
    s_add_u32 s7, s7, s57
    s_lshl_b32 s7, s7, 8
    s_add_u32 s7, s7, {WS_PART}
    v_lshlrev_b32 v59, 17, v4
    v_lshl_add_u32 v59, v3, 4, v59""")
    for np_ in range(4):
        b0 = 80 + 8 * np_
        a(f"""v_cvt_pk_bf16_f32 v{b0}, v{b0}, v{b0+1}
        v_cvt_pk_bf16_f32 v{b0+1}, v{b0+2}, v{b0+3}
        v_cvt_pk_bf16_f32 v{b0+2}, v{b0+4}, v{b0+5}
        v_cvt_pk_bf16_f32 v{b0+3}, v{b0+6}, v{b0+7}
        v_min_u32 v{b0}, s61, v{b0}
        v_min_u32 v{b0+1}, s61, v{b0+1}
        v_min_u32 v{b0+2}, s61, v{b0+2}
        v_min_u32 v{b0+3}, s61, v{b0+3}""")
        a.vmop(f"buffer_store_dwordx4 v[{b0}:{b0+3}], v59, {R(sWS)}, s7 offen offset:{64*np_} sc1", "part")
    a("""s_cmp_lg_u32 s5, 0
    s_cbranch_scc1 NOSTAT
    v_cmp_gt_u32 vcc, 16, v1
    s_and_saveexec_b64 s[62:63], vcc""")
    a(f"buffer_store_dwordx2 v[60:61], v58, {R(sWS)}, s6 offen sc1")
    a("s_mov_b64 exec, s[62:63]")
    a.label("NOSTAT")
    a(f"""s_lshl_b32 s6, s5, 13
    v_add_u32 v58, s6, v31
    s_lshl_b32 s6, s5, 14
    s_add_u32 s6, s6, {L_WO}
    v_add_u32 v59, s6, v31""")
    a.wait_vm("wuv", "wo")
    for i in range(8):
        a(f"ds_write_b128 v58, a[{4*i}:{4*i+3}] offset:{L_UV+1024*i}")
    for i in range(16):
        a(f"ds_write_b128 v59, a[{32+4*i}:{35+4*i}] offset:{1024*i}")
    a(f"""v_lshlrev_b32 v58, 7, v6
    v_lshl_add_u32 v58, v3, 4, v58
    v_add_u32 v58, {L_H1}, v58
    ds_read_b128 v[64:67], v58
    ds_read_b128 v[68:71], v58 offset:64""")
    for t in range(2):
        b = 72 + 4 * t
        a(f"ds_read_b64_tr_b16 v[{b}:{b+1}], v57 offset:{4096*t}")
        a(f"ds_read_b64_tr_b16 v[{b+2}:{b+3}], v57 offset:{4096*t+2048}")
    a(f"""s_lshl_b32 s6, s60, 1
    s_lshr_b32 s7, s5, 1
    s_add_u32 s6, s6, s7
    s_mul_i32 s6, s6, {SP_ROWS*128}
    s_add_u32 s7, s59, 128
    s_lshl_b32 s7, s7, 7
    s_add_u32 s6, s6, s7
    s_and_b32 s7, s5, 1
    s_lshl_b32 s7, s7, 6
    s_add_u32 s6, s6, s7
    s_add_u32 s6, s6, {WS_SP}
    s_mov_b32 s7, {16*SP_ROWS*128}
    v_mul_lo_u32 v63, v4, s7
    v_lshl_add_u32 v63, v3, 4, v63
    s_waitcnt lgkmcnt(0)
    v_mfma_f32_16x16x32_bf16 v[80:83], v[72:75], v[64:67], 0
    v_mfma_f32_16x16x32_bf16 v[80:83], v[76:79], v[68:71], v[80:83]
    v_cmp_gt_u32 vcc, 4, v4
    s_and_saveexec_b64 s[62:63], vcc
    s_nop 7
    v_min_u32 v80, s61, v80
    v_min_u32 v81, s61, v81
    v_min_u32 v82, s61, v82
    v_min_u32 v83, s61, v83
    buffer_store_dwordx4 v[80:83], v63, {R(sWS)}, s6 offen sc1
    s_mov_b64 exec, s[62:63]""")
    ts(a, 12)
    for q in range(2):
        a(f"""s_lshl_b32 s6, s5, 2
        s_add_u32 s6, s6, {2*q}
        v_xor_b32 v58, s6, v7
        v_lshl_add_u32 v58, v58, 4, v56
        v_lshl_add_u32 v{24+q}, v2, 8, v58""")
    for q in range(4):
        a(f"""s_lshl_b32 s6, s5, 3
        s_add_u32 s6, s6, {2*q}
        s_and_b32 s7, s6, 15
        s_and_b32 s6, s6, 16
        v_xor_b32 v58, s7, v7
        v_add_u32 v58, s6, v58
        v_lshl_add_u32 v58, v58, 4, v56
        v_lshl_add_u32 v58, v2, 9, v58
        v_add_u32 v{26+q}, {L_WO}, v58""")
    a(f"""v_lshlrev_b32 v30, 8, v6
    v_lshl_add_u32 v30, v3, 4, v30
    v_add_u32 v30, {L_CL}, v30""")
    a(f"""s_lshl_b32 s6, s3, 2
    s_add_u32 s6, s6, s5
    s_lshl_b32 s6, s6, 8
    s_add_u32 s6, s6, {WS_STATS}
    v_lshlrev_b32 v58, 6, v3
    s_mov_b32 s7, {SPIN_MAX}""")
    a.label("E2S_POLL")
    for i in range(4):
        a(f"buffer_load_dwordx4 v[{64+4*i}:{67+4*i}], v58, {R(sWS)}, s6 offen offset:{16*i} sc1")
    a("""s_waitcnt vmcnt(0)
    v_max3_u32 v59, v64, v65, v66""")
    for i in range(6):
        a(f"v_max3_u32 v59, v59, v{67+2*i}, v{68+2*i}")
    a("""v_max_u32 v59, v59, v79
    v_cmp_eq_u32 vcc, -1, v59
    s_cbranch_vccz E2S_DONE
    s_sub_u32 s7, s7, 1
    s_cmp_eq_u32 s7, 0
    s_cbranch_scc1 E2S_DONE
    s_sleep 1
    s_branch E2S_POLL""")
    a.label("E2S_DONE")
    a(f"""s_lshl_b32 s6, s3, 2
    s_and_b32 s7, s4, 3
    s_add_u32 s6, s6, s7
    s_lshl_b32 s6, s6, 2
    s_add_u32 s6, s6, s5
    s_lshl_b32 s6, s6, 13
    s_add_u32 s6, s6, {WS_PART}
    s_add_u32 s61, s6, 4096
    s_mov_b32 s7, {SPIN_MAX}""")
    a.label("E2P_POLL")
    for i in range(8):
        a(f"buffer_load_dwordx4 v[{80+4*i}:{83+4*i}], v31, {R(sWS)}, s{6 if i < 4 else 61} offen offset:{1024*(i&3)} sc1")
    ts(a, 13)
    a("""v_max3_f32 v59, v64, v66, v68
    v_max3_f32 v59, v59, v70, v72
    v_max3_f32 v59, v59, v74, v76
    v_max_f32 v59, v59, v78""")
    xg_reduce(a, "v59", "v60", "v_max_f32")
    for i in range(8):
        a(f"v_sub_f32 v{112+i}, v{64+2*i}, v59")
    for i in range(8):
        a(f"v_exp_f32 v{112+i}, v{112+i}")
    a("s_nop 0\nv_mul_f32 v60, v112, v65")
    for i in range(1, 8):
        a(f"v_fmac_f32 v60, v{112+i}, v{65+2*i}")
    xg_reduce(a, "v60", "v61", "v_add_f32")
    a("v_rcp_f32 v60, v60\ns_nop 0")
    for i in range(8):
        a(f"v_mul_f32 v{112+i}, v{112+i}, v60")
    a("""s_waitcnt vmcnt(0)
    v_max3_u32 v59, v80, v81, v82""")
    for i in range(14):
        a(f"v_max3_u32 v59, v59, v{83+2*i}, v{84+2*i}")
    a("""v_max_u32 v59, v59, v111
    v_cmp_eq_u32 vcc, -1, v59
    s_cbranch_vccz E2P_DONE
    s_sub_u32 s7, s7, 1
    s_cmp_eq_u32 s7, 0
    s_cbranch_scc1 E2P_DONE
    s_branch E2P_POLL""")
    a.label("E2P_DONE")
    ts(a, 14)
    for i in range(8):
        for k in range(4):
            src = 80 + 4 * i + k
            a(f"v_lshlrev_b32 v59, 16, v{src}\nv_and_b32 v60, 0xffff0000, v{src}")
            if i == 0:
                a(f"v_mul_f32 v{120+2*k}, v112, v59\nv_mul_f32 v{121+2*k}, v112, v60")
            else:
                a(f"v_fmac_f32 v{120+2*k}, v{112+i}, v59\nv_fmac_f32 v{121+2*k}, v{112+i}, v60")
    for k in range(8):
        xg_reduce(a, f"v{120+k}", "v59", "v_add_f32")
    for k in range(4):
        a(f"v_cvt_pk_bf16_f32 v{120+k}, v{120+2*k}, v{121+2*k}")
    a(f"""s_lshl_b32 s6, s5, 8
    s_add_u32 s6, s6, {L_CL}
    v_lshlrev_b32 v59, 4, v4
    v_add_u32 v59, s6, v59
    ds_write_b128 v59, v[120:123]
    s_waitcnt lgkmcnt(0)
    s_barrier""")
    for t in range(4):
        a(f"ds_read_b128 v[{64+4*t}:{67+4*t}], v30 offset:{64*t}")
    for t in range(4):
        for q in range(2):
            b = 128 + 8 * t + 4 * q
            a(f"ds_read_b64_tr_b16 v[{b}:{b+1}], v{24+q} offset:{L_UV+8192*t}")
            a(f"ds_read_b64_tr_b16 v[{b+2}:{b+3}], v{24+q} offset:{L_UV+8192*t+4096}")
    for t in range(4):
        for q in range(2):
            b = 128 + 8 * t + 4 * q
            a(f"s_waitcnt lgkmcnt({14 - 4*t - 2*q})")
            c = "0" if t == 0 else f"v[{80+4*q}:{83+4*q}]"
            a(f"v_mfma_f32_16x16x32_bf16 v[{80+4*q}:{83+4*q}], v[{b}:{b+3}], v[{64+4*t}:{67+4*t}], {c}")
    for t in range(4):
        for q in range(4):
            b = 128 + 16 * t + 4 * q
            if t < 2:
                continue
            a(f"ds_read_b64_tr_b16 v[{b}:{b+1}], v{26+q} offset:{16384*t}")
            a(f"ds_read_b64_tr_b16 v[{b+2}:{b+3}], v{26+q} offset:{16384*t+8192}")
    a(f"""v_lshlrev_b32 v59, 8, v4
    v_lshl_add_u32 v59, v3, 4, v59
    s_lshl_b32 s6, s5, 6
    s_add_u32 s6, s6, {L_CT}
    v_add_u32 v59, s6, v59
    v_cmp_gt_u32 vcc, 4, v4
    s_nop 2
    v_cvt_pk_bf16_f32 v80, v80, v81
    v_cvt_pk_bf16_f32 v81, v82, v83
    v_cvt_pk_bf16_f32 v82, v84, v85
    v_cvt_pk_bf16_f32 v83, v86, v87
    s_and_saveexec_b64 s[62:63], vcc
    ds_write_b128 v59, v[80:83]
    s_mov_b64 exec, s[62:63]""")
    for t in range(2):
        for q in range(4):
            b = 128 + 16 * t + 4 * q
            a(f"ds_read_b64_tr_b16 v[{b}:{b+1}], v{26+q} offset:{16384*t}")
            a(f"ds_read_b64_tr_b16 v[{b+2}:{b+3}], v{26+q} offset:{16384*t+8192}")
    a("s_waitcnt lgkmcnt(0)\ns_barrier")
    a(f"v_add_u32 v30, {L_CT-L_CL}, v30")
    for t in range(4):
        a(f"ds_read_b128 v[{64+4*t}:{67+4*t}], v30 offset:{64*t}")
    for t in range(4):
        a(f"s_waitcnt lgkmcnt({3-t})")
        for q in range(4):
            b = 128 + 16 * t + 4 * q
            c = "0" if t == 0 else f"v[{80+4*q}:{83+4*q}]"
            a(f"v_mfma_f32_16x16x32_bf16 v[{80+4*q}:{83+4*q}], v[{b}:{b+3}], v[{64+4*t}:{67+4*t}], {c}")
    a(f"""s_lshr_b32 s6, s4, 2
    s_lshl_b32 s6, s6, 3
    s_lshl_b32 s7, s5, 1
    s_add_u32 s6, s6, s7
    s_mul_i32 s6, s6, {SP_ROWS*128}
    s_lshl_b32 s7, s3, 2
    s_and_b32 s61, s4, 3
    s_add_u32 s7, s7, s61
    s_lshl_b32 s7, s7, 7
    s_add_u32 s6, s6, s7
    s_add_u32 s6, s6, {WS_SP}
    s_add_u32 s7, s6, {SP_ROWS*128}
    s_mov_b32 s61, 0xfffffffe
    v_cmp_gt_u32 vcc, 4, v4
    s_and_saveexec_b64 s[62:63], vcc
    s_nop 2""")
    for i in range(16):
        a(f"v_min_u32 v{80+i}, s61, v{80+i}")
    a(f"""buffer_store_dwordx4 v[80:83], v63, {R(sWS)}, s6 offen sc1
    buffer_store_dwordx4 v[84:87], v63, {R(sWS)}, s6 offen offset:64 sc1
    buffer_store_dwordx4 v[88:91], v63, {R(sWS)}, s7 offen sc1
    buffer_store_dwordx4 v[92:95], v63, {R(sWS)}, s7 offen offset:64 sc1
    s_mov_b64 exec, s[62:63]""")
    ts(a, 15)
    a(f"""s_cmp_ge_u32 s2, 64
    s_cbranch_scc1 K_FIN
    v_lshrrev_b32 v2, 3, v0
    v_and_b32 v7, 7, v0            ; chunk
    s_mul_i32 s6, s2, {SP_ROWS*128}
    s_add_u32 s6, s6, {WS_SP}
    v_lshlrev_b32 v58, 4, v0       ; tid*16
    s_lshl_b32 s7, s2, 6
    v_lshlrev_b32 v59, 1, v0
    buffer_load_ushort v28, v59, {R(sX)}, s7 offen
    v_mov_b32 v24, 0
    v_mov_b32 v25, 0
    v_mov_b32 v26, 0
    v_mov_b32 v27, 0
    s_add_u32 s52, s6, 4096
    s_add_u32 s53, s6, 8192
    s_add_u32 s54, s6, 12288
    s_add_u32 s55, s6, 16384
    v_cmp_gt_u32 s[56:57], 28, v2
    s_mov_b32 s58, {SPIN_MAX}""")
    a.label("E3_POLL")
    a(f"""buffer_load_dwordx4 v[8:11], v58, {R(sWS)}, s6 offen sc1
    buffer_load_dwordx4 v[12:15], v58, {R(sWS)}, s52 offen sc1
    buffer_load_dwordx4 v[16:19], v58, {R(sWS)}, s53 offen sc1
    buffer_load_dwordx4 v[20:23], v58, {R(sWS)}, s54 offen sc1
    s_mov_b64 exec, s[56:57]
    buffer_load_dwordx4 v[24:27], v58, {R(sWS)}, s55 offen sc1
    s_mov_b64 exec, -1
    s_waitcnt vmcnt(0)
    v_max3_u32 v29, v8, v9, v10""")
    for i in range(8):
        a(f"v_max3_u32 v29, v29, v{11+2*i}, v{12+2*i}")
    a("""v_max_u32 v29, v29, v27
    v_cmp_eq_u32 vcc, -1, v29
    s_cbranch_vccz E3_DONE
    s_sub_u32 s58, s58, 1
    s_cmp_eq_u32 s58, 0
    s_cbranch_scc1 E3_DONE
    s_branch E3_POLL""")
    a.label("E3_DONE")
    ts(a, 16)
    for i in range(4):
        a(f"v_add_f32 v{8+i}, v{8+i}, v{12+i}\nv_add_f32 v{16+i}, v{16+i}, v{20+i}\nv_add_f32 v{8+i}, v{8+i}, v{16+i}")
    for r in list(range(8, 12)) + list(range(24, 28)):
        a(f"s_nop 1\nv_add_f32_dpp v{r}, v{r}, v{r} row_ror:8 row_mask:0xf bank_mask:0xf")
        xg_reduce(a, f"v{r}", "v29", "v_add_f32")
    L_R = L_QL
    a(f"""s_lshl_b32 s6, s5, 8
    s_add_u32 s6, s6, {L_R}
    v_lshlrev_b32 v30, 4, v7
    v_add_u32 v30, s6, v30
    v_cmp_gt_u32 vcc, 8, v1
    s_and_saveexec_b64 s[62:63], vcc
    ds_write_b128 v30, v[8:11]
    ds_write_b128 v30, v[24:27] offset:128
    s_mov_b64 exec, s[62:63]
    s_waitcnt lgkmcnt(0)
    s_barrier
    v_cmp_gt_u32 vcc, 32, v0
    s_and_saveexec_b64 s[62:63], vcc
    s_cbranch_execz K_FIN
    v_lshlrev_b32 v30, 2, v0
    v_add_u32 v30, {L_R}, v30""")
    for w in range(4):
        a(f"ds_read_b32 v{8+w}, v30 offset:{256*w}\nds_read_b32 v{12+w}, v30 offset:{256*w+128}")
    a(f"""s_waitcnt lgkmcnt(0)
    v_add_f32 v8, v8, v9
    v_add_f32 v10, v10, v11
    v_add_f32 v8, v8, v10           ; s
    v_add_f32 v12, v12, v13
    v_add_f32 v14, v14, v15
    v_add_f32 v12, v12, v14         ; ffn
    v_mul_f32 v13, {f2u(-LOG2E):#x}, v12
    v_exp_f32 v13, v13
    s_nop 0
    v_add_f32 v13, 1.0, v13
    v_rcp_f32 v13, v13
    s_nop 0
    v_mul_f32 v12, v12, v13         ; silu(ffn)
    v_lshlrev_b32 v28, 16, v28
    v_fmac_f32 v28, v8, v12
    v_cvt_pk_bf16_f32 v28, v28, v28
    buffer_store_short v28, v59, {R(sOUT)}, s7 offen""")
    a.label("K_FIN")
    if TS:
        a("s_mov_b64 exec, -1\ns_waitcnt vmcnt(0)")
        ts(a, 17)
        a(f"""s_waitcnt lgkmcnt(0)
        s_cmp_lg_u32 s5, 0
        s_cbranch_scc1 K_END
        v_mov_b32 v250, 0""")
        for p in range(18):
            a(f"v_writelane_b32 v250, s{64+2*p}, {p}")
        a("v_writelane_b32 v250, s100, 30\nv_writelane_b32 v250, s101, 31")
        a(f"""s_lshl_b32 s6, s2, 7
        s_add_u32 s6, s6, {WS_TS}
        v_lshlrev_b32 v251, 2, v1
        v_cmp_gt_u32 vcc, 32, v1
        s_and_saveexec_b64 s[62:63], vcc
        buffer_store_dword v250, v251, {R(sWS)}, s6 offen""")
    a.label("K_END")
    a("s_endpgm")
    return a.text(), name, 256, lds


def main():
    ref = open(f"cdna_kernels/{NAME}.s.ref").read()
    head = []
    for line in ref.split("\n"):
        if line.startswith("; @launch") or line.startswith("; Override") or line.startswith("; grid="):
            continue
        if line.startswith(";"):
            head.append(line)
        else:
            break
    txt, name, grid, lds = fused()
    out = "\n".join(head) + "\n"
    if DIAG:
        out += f"; @launch kernel=fused_kernel grid=({grid},1,1) block=(256,1,1) lds={lds}\n"
        out += f"; @launch kernel={name} grid=(1,1,1) block=(256,1,1) lds=0\n"
        txt = txt.replace(name, "fused_kernel")
    else:
        out += f"; @launch grid=({grid},1,1) block=(256,1,1) lds={lds}\n"
    out += '.amdgcn_target "amdgcn-amd-amdhsa--gfx950"\n.text\n'
    out += txt
    if DIAG:
        order = [0, 1, 3, 4, 6, 7, 8, 9, 11, 12, 13, 14, 15, 16, 17]
        p = A()
        p.raw(f".globl {name}\n.p2align 8\n.type {name},@function\n{name}:")
        p("""s_load_dwordx4 s[4:7], s[0:1], 88
        s_cmp_lg_u32 s2, 0
        s_cbranch_scc1 P_END
        s_waitcnt lgkmcnt(0)""")
        srd(p, 8, 4, 256)
        srd(p, 12, 6, WS_BYTES)
        p(f"""v_lshlrev_b32 v1, 7, v0
        s_mov_b32 s16, {WS_TS}
        buffer_load_dword v2, v1, s[12:15], s16 offen
        s_waitcnt vmcnt(0)
        v_not_b32 v2, v2
        v_mov_b32 v3, 0
        buffer_atomic_umax v2, v3, s[8:11], 0 offen""")
        for i, st in enumerate(order):
            p(f"""buffer_load_dword v2, v1, s[12:15], s16 offen offset:{4*st}
            s_waitcnt vmcnt(0)
            v_mov_b32 v3, {4*(i+1)}""")
            if st == 16:
                p("v_cmp_gt_u32 vcc, 64, v0\ns_and_saveexec_b64 s[18:19], vcc")
            p("buffer_atomic_umax v2, v3, s[8:11], 0 offen")
            if st == 16:
                p("s_mov_b64 exec, s[18:19]")
        p.raw("P_END:")
        p("s_endpgm")
        out += p.text()
    out += '.section .rodata,"a"\n'
    if DIAG:
        out += f""".p2align 6
.amdhsa_kernel {name}
  .amdhsa_next_free_vgpr 8
  .amdhsa_next_free_sgpr 32
  .amdhsa_accum_offset 8
  .amdhsa_group_segment_fixed_size 0
  .amdhsa_kernarg_size 104
  .amdhsa_user_sgpr_count 2
  .amdhsa_user_sgpr_kernarg_segment_ptr 1
  .amdhsa_system_sgpr_workgroup_id_x 1
.end_amdhsa_kernel
"""
        name = "fused_kernel"
    out += f""".p2align 6
.amdhsa_kernel {name}
  .amdhsa_next_free_vgpr 512
  .amdhsa_next_free_sgpr 102
  .amdhsa_accum_offset 256
  .amdhsa_group_segment_fixed_size 0
  .amdhsa_kernarg_size 104
  .amdhsa_user_sgpr_count 2
  .amdhsa_user_sgpr_kernarg_segment_ptr 1
  .amdhsa_system_sgpr_workgroup_id_x 1
.end_amdhsa_kernel
"""
    dst = sys.argv[1] if len(sys.argv) > 1 else f"cdna_kernels/{NAME}.s"
    open(dst, "w").write(out)
    print("wrote", dst, len(out))


if __name__ == "__main__":
    main()
```

```python
import sys
import os
import struct

NAME = "recurrent_scan__compressed_kv_cla__swiglu_ffn__decode"

WS_QL = 0x000000
WS_GU = 0x040000
WS_STATS = 0x090000
WS_SP = 0x100000
WS_PART = 0x400000
WS_TS = 0x8000000
WS_BYTES = 0x10000000
SP_ROWS = 156

QSCALE = (128 ** -0.5) * 1.4426950408889634
LOG2E = 1.4426950408889634
DIAG = bool(os.environ.get("DIAG"))
TS = bool(os.environ.get("TS")) or DIAG
SPIN_MAX = 40000
NT = set(os.environ.get("NT", "").split(","))


def nt(tag):
    return " nt" if tag in NT or "all" in NT else ""


P2A = int(os.environ.get("P2A", "8"))


def f2u(x):
    return struct.unpack("<I", struct.pack("<f", x))[0]


class A:
    def __init__(self):
        self.l = []
        self.vm = []

    def __call__(self, s):
        for line in s.strip("\n").split("\n"):
            line = line.strip()
            if line:
                self.l.append("    " + line)

    def label(self, s):
        self.l.append(s + ":")

    def raw(self, s):
        self.l.append(s)

    def text(self):
        return "\n".join(self.l) + "\n"

    def vmop(self, s, tag):
        self(s)
        self.vm.append(tag)

    def wait_vm(self, *tags, extra=""):
        last = max(i for i, t in enumerate(self.vm) if t in tags)
        n = len(self.vm) - 1 - last
        assert n <= 63, n
        self(f"s_waitcnt vmcnt({n}) {extra}")


def srd(a, d, lo, nbytes):
    a(f"""s_mov_b32 s{d}, s{lo}
    s_mov_b32 s{d+1}, s{lo+1}
    s_mov_b32 s{d+2}, {nbytes}
    s_mov_b32 s{d+3}, 0x00020000""")


def ts(a, p):
    if TS:
        a(f"s_memrealtime s[{64+2*p}:{65+2*p}]")


def xg_reduce(a, v, t, op):
    a(f"""v_mov_b32 {t}, {v}
    s_nop 1
    v_permlane16_swap_b32 {v}, {t}
    s_nop 1
    {op} {v}, {v}, {t}
    v_mov_b32 {t}, {v}
    s_nop 1
    v_permlane32_swap_b32 {v}, {t}
    s_nop 1
    {op} {v}, {v}, {t}""")


def wave_sum(a, v, t):
    for r in (8, 4, 2, 1):
        a(f"s_nop 1\nv_add_f32_dpp {v}, {v}, {v} row_ror:{r} row_mask:0xf bank_mask:0xf")
    xg_reduce(a, v, t, "v_add_f32")


sX, sCKV, sWQ, sWUK, sWUV, sWO, sFF, sWS, sDN, sOUT, sDBG = 8, 12, 16, 20, 24, 28, 32, 36, 40, 44, 48


def R(d):
    return f"s[{d}:{d+3}]"


def fused():
    a = A()
    name = NAME + "_kernel"
    a.raw(f".globl {name}")
    a.raw(".p2align 8")
    a.raw(f".type {name},@function")
    a.label(name)
    L_QL = 131072
    L_P = L_QL + 16384
    L_Q = L_P
    L_X = L_P + 4096
    L_MX, L_LS, L_CL, L_CT, L_H1 = L_X, L_X + 256, L_X + 1024, L_X + 2048, L_X + 3072
    L_DN = L_X + 4096
    lds = L_DN + 8192
    WQ_OFF, FF_OFF = 12288, 28672
    L_UV, L_WO = 0, 32768
    if TS:
        a("s_getpc_b64 s[100:101]")
    a("""s_load_dwordx16 s[64:79], s[0:1], 0
    s_load_dwordx8 s[80:87], s[0:1], 64
    s_load_dwordx2 s[88:89], s[0:1], 96
    s_cmp_ge_u32 s2, 256
    s_cbranch_scc1 K_END
    v_and_b32 v1, 63, v0
    v_lshrrev_b32 v2, 6, v0
    s_and_b32 s3, s2, 7
    v_readfirstlane_b32 s5, v2
    s_lshr_b32 s6, s2, 3
    s_and_b32 s7, s6, 3
    s_lshl_b32 s7, s7, 3
    s_or_b32 s3, s3, s7            ; h
    s_lshr_b32 s4, s2, 5           ; j
    s_and_b32 s52, s4, 1           ; dh
    s_lshr_b32 s53, s4, 1          ; cs
    s_min_u32 s6, s2, 223
    s_and_b32 s54, s6, 3           ; ks
    s_lshr_b32 s7, s6, 2           ; cb 0..55
    s_cmp_ge_u32 s7, 28
    s_cselect_b32 s56, 1, 0        ; mat
    s_mul_i32 s55, s56, 28
    s_sub_u32 s55, s7, s55         ; cbk
    s_lshr_b32 s59, s6, 3          ; fs 0..27
    s_and_b32 s60, s6, 7           ; ms 0..7
    s_lshr_b32 s6, s2, 3
    s_and_b32 s58, s6, 1           ; hg
    s_lshr_b32 s6, s2, 4
    s_lshl_b32 s6, s6, 3
    s_and_b32 s57, s2, 7
    s_or_b32 s57, s57, s6          ; T 0..127
    v_lshrrev_b32 v3, 4, v1        ; g
    v_and_b32 v4, 15, v1           ; i16
    v_bfe_u32 v5, v1, 2, 2         ; r
    v_and_b32 v6, 3, v1            ; c'
    v_lshlrev_b32 v31, 4, v1       ; l*16
    s_waitcnt lgkmcnt(0)""")
    srd(a, sX, 64, 4096)
    srd(a, sWQ, 68, 4194304)
    a("""s_cmp_eq_u32 s56, 1
    s_cselect_b32 s78, s80, s78
    s_cselect_b32 s79, s81, s79""")
    srd(a, sFF, 78, 1835008)
    srd(a, sWUK, 70, 4194304)
    srd(a, sWS, 88, WS_BYTES)
    srd(a, sDN, 82, 1835008)
    srd(a, sCKV, 66, 16777216)
    srd(a, sWUV, 72, 4194304)
    srd(a, sWO, 74, 4194304)
    srd(a, sOUT, 84, 4096)
    srd(a, sDBG, 86, 256)
    ts(a, 0)
    a("s_lshl_b32 s6, s5, 10")
    a.vmop(f"buffer_load_dwordx4 v[8:11], v31, {R(sX)}, s6 offen", "x")
    a(f"""v_lshrrev_b32 v7, 3, v1        ; l>>3
    v_and_b32 v2, 7, v1
    v_lshlrev_b32 v28, 1, v3
    v_xor_b32 v2, v2, v28
    v_lshlrev_b32 v2, 4, v2
    v_lshl_add_u32 v29, v7, 13, v2 ; w_q voff
    s_movk_i32 s6, 3584
    v_mul_lo_u32 v28, v7, s6
    v_add_u32 v28, v28, v2
    v_lshl_add_u32 v30, v7, 10, v2
    s_lshl_b32 s6, s5, 20
    s_lshl_b32 s7, s3, 8
    s_add_u32 s6, s6, s7
    s_lshl_b32 s7, s52, 7
    s_add_u32 s6, s6, s7
    s_lshl_b32 s7, s5, 15
    s_add_u32 m0, s7, {WQ_OFF}""")
    for i in range(16):
        a.vmop(f"s_nop 0\nbuffer_load_dwordx4 v29, {R(sWQ)}, s6 offen{nt('wq')} lds", "wq")
        if i < 15:
            a(f"s_add_u32 s6, s6, {8*8192}\ns_add_u32 m0, m0, 1024")
    a(f"""s_lshl_b32 s6, s54, 7
    s_lshl_b32 s7, s5, 5
    s_add_u32 s6, s6, s7
    s_mul_i32 s6, s6, 3584
    s_lshl_b32 s7, s55, 7
    s_add_u32 s6, s6, s7
    s_lshl_b32 s7, s5, 15
    s_add_u32 m0, s7, {FF_OFF}""")
    for i in range(4):
        a.vmop(f"s_nop 0\nbuffer_load_dwordx4 v28, {R(sFF)}, s6 offen{nt('ff')} lds", "ff")
        if i < 3:
            a(f"s_add_u32 s6, s6, {8*3584}\ns_add_u32 m0, m0, 1024")
    a(f"""v_lshrrev_b32 v7, 2, v4
    v_and_b32 v2, 3, v4
    v_lshl_add_u32 v7, v7, 3, v2
    v_lshlrev_b32 v7, 13, v7
    v_lshl_add_u32 v7, v3, 4, v7
    s_lshl_b32 s6, s53, 7
    s_lshl_b32 s7, s5, 5
    s_add_u32 s6, s6, s7
    s_lshl_b32 s6, s6, 13
    s_lshl_b32 s7, s3, 8
    s_add_u32 s6, s6, s7
    s_lshl_b32 s7, s52, 7
    s_add_u32 s6, s6, s7
    s_add_u32 s7, s6, 32768""")
    for q in range(2):
        for t in range(2):
            b = 12 + 8 * q + 4 * t
            a.vmop(f"buffer_load_dwordx4 v[{b}:{b+3}], v7, {R(sWUK)}, s{6+q} offen offset:{64*t}{nt('wuk')}", "wuk")
    a(f"""v_mov_b32 v40, -1
    v_mov_b32 v41, -1
    v_mov_b32 v42, -1
    v_mov_b32 v43, -1
    v_lshlrev_b32 v7, 4, v0        ; tid*16
    s_lshl_b32 s6, s3, 2
    s_and_b32 s7, s4, 3
    s_add_u32 s6, s6, s7           ; h*4+cj
    s_lshl_b32 s6, s6, 15
    s_lshr_b32 s7, s4, 2
    s_lshl_b32 s7, s7, 14
    s_add_u32 s6, s6, s7
    s_add_u32 s6, s6, {WS_PART}""")
    for i in range(4):
        a.vmop(f"buffer_store_dwordx4 v[40:43], v7, {R(sWS)}, s6 offen sc1", "rst")
        if i < 3:
            a("s_add_u32 s6, s6, 4096")
    a(f"""s_mul_i32 s6, s2, 4992
    s_mul_i32 s7, s5, 1248
    s_add_u32 s6, s6, s7
    s_add_u32 s6, s6, {WS_SP}""")
    a.vmop(f"buffer_store_dwordx4 v[40:43], v31, {R(sWS)}, s6 offen sc1", "rst")
    a("""v_cmp_gt_u32 vcc, 14, v1
    s_and_saveexec_b64 s[62:63], vcc""")
    a.vmop(f"buffer_store_dwordx4 v[40:43], v31, {R(sWS)}, s6 offen offset:1024 sc1", "rst")
    a(f"""s_lshl_b32 s6, s3, 10
    s_lshl_b32 s7, s4, 7
    s_add_u32 s6, s6, s7
    s_lshl_b32 s7, s5, 5
    s_add_u32 s6, s6, s7
    s_add_u32 s6, s6, {WS_STATS}
    v_cmp_gt_u32 vcc, 2, v1
    s_and_b64 exec, exec, vcc""")
    a.vmop(f"buffer_store_dwordx4 v[40:43], v31, {R(sWS)}, s6 offen sc1", "rst")
    a("s_mov_b64 exec, s[62:63]")
    a(f"""s_lshl_b32 s6, s59, 6
    s_lshl_b32 s7, s5, 4
    s_add_u32 s6, s6, s7
    s_lshl_b32 s6, s6, 10
    s_lshl_b32 s7, s60, 7
    s_add_u32 s6, s6, s7
    s_lshl_b32 s7, s5, 11
    s_add_u32 m0, s7, {L_DN}""")
    a.vmop(f"s_nop 0\nbuffer_load_dwordx4 v30, {R(sDN)}, s6 offen{nt('dn')} lds", "dn")
    a("s_add_u32 s6, s6, 8192\ns_add_u32 m0, m0, 1024")
    a.vmop(f"s_nop 0\nbuffer_load_dwordx4 v30, {R(sDN)}, s6 offen{nt('dn')} lds", "dn")
    for k in range(8):
        a(f"v_xor_b32 v{32+k}, {k << 5}, v31")
    a("""s_lshl_b32 s61, s57, 17
    s_lshl_b32 s7, s5, 15
    s_add_u32 s61, s61, s7
    s_mov_b32 m0, s7""")

    def ckv_dma(k0, k1):
        for i in range(k0, k1):
            if i % 4 == 0 or i == k0:
                a(f"s_lshl_b32 s7, s5, 15\ns_add_u32 m0, s7, {4096*(i//4)}\ns_add_u32 s6, s61, {4096*(i//4)}")
            a.vmop(f"buffer_load_dwordx4 v{32 + (i & 7)}, {R(sCKV)}, s6 offen offset:{1024*(i&3)}{nt('ckv')} lds", "ckv")
    ckv_dma(0, 12)
    ts(a, 1)
    a(f"""v_lshl_add_u32 v2, v3, 2, v5   ; rowl
    v_and_b32 v7, 1, v6
    v_lshrrev_b32 v44, 1, v6
    v_lshlrev_b32 v7, 3, v7
    v_lshl_add_u32 v56, v44, 4, v7 ; cc
    v_and_b32 v7, 1, v3
    v_lshlrev_b32 v7, 1, v7
    v_lshrrev_b32 v44, 1, v5
    v_add_u32 v7, v7, v44
    v_lshlrev_b32 v7, 1, v7        ; f3
    s_lshl_b32 s6, s5, 1
    v_xor_b32 v7, s6, v7
    v_lshl_add_u32 v7, v7, 4, v56
    v_lshl_add_u32 v44, v2, 7, v7
    v_add_u32 v47, 0x10000, v44
    v_add_u32 v57, {L_DN}, v44
    v_lshlrev_b32 v45, 10, v6
    v_lshl_add_u32 v45, v3, 4, v45
    v_add_u32 v45, {L_X}, v45
    v_lshrrev_b32 v46, 2, v1
    v_lshlrev_b32 v46, 6, v46
    v_and_b32 v7, 1, v6
    v_lshl_add_u32 v46, v7, 5, v46
    v_lshrrev_b32 v7, 1, v6
    v_lshl_add_u32 v46, v7, 3, v46
    s_lshl_b32 s6, s5, 10
    s_add_u32 s6, s6, {L_X}
    v_add_u32 v46, s6, v46""")
    a.wait_vm("x")
    ts(a, 2)
    for i in range(4):
        a(f"v_lshlrev_b32 v{48+2*i}, 16, v{8+i}\nv_and_b32 v{49+2*i}, 0xffff0000, v{8+i}")
    a("""v_add_f32 v58, v48, v49
    v_add_f32 v59, v50, v51
    v_add_f32 v60, v52, v53
    v_add_f32 v61, v54, v55
    v_add_f32 v58, v58, v59
    v_add_f32 v60, v60, v61
    v_add_f32 v58, v58, v60""")
    wave_sum(a, "v58", "v59")
    a(f"v_mul_f32 v58, {f2u(1.0/512):#x}, v58")
    for i in range(8):
        a(f"v_sub_f32 v{48+i}, v{48+i}, v58")
    a("v_mul_f32 v59, v48, v48")
    for i in range(1, 8):
        a(f"v_fmac_f32 v59, v{48+i}, v{48+i}")
    wave_sum(a, "v59", "v60")
    a(f"""v_mov_b32 v60, {f2u(1e-5):#x}
    v_fmac_f32 v60, {f2u(1.0/512):#x}, v59
    v_rsq_f32 v60, v60
    s_nop 0""")
    for i in range(8):
        a(f"v_mul_f32 v{48+i}, v{48+i}, v60")
    for i in range(4):
        a(f"v_cvt_pk_bf16_f32 v{60+i}, v{48+2*i}, v{49+2*i}")
    a("""ds_write_b64 v46, v[60:61]
    ds_write_b64 v46, v[62:63] offset:16""")
    a.wait_vm("wq", "ff", extra="lgkmcnt(0)")
    a("s_barrier")
    ts(a, 3)
    a("s_lshl_b32 s6, s54, 8\nv_add_u32 v58, s6, v45")
    for t in range(4):
        a(f"ds_read_b128 v[{200+4*t}:{203+4*t}], v58 offset:{64*t}")
        rb = "v44" if t < 2 else "v47"
        off = FF_OFF + 32768 * (t & 1)
        a(f"ds_read_b64_tr_b16 v[{216+4*t}:{217+4*t}], {rb} offset:{off}")
        a(f"ds_read_b64_tr_b16 v[{218+4*t}:{219+4*t}], {rb} offset:{off+2048}")

    def q_reads(t):
        a(f"ds_read_b128 v[{64+4*t}:{67+4*t}], v45 offset:{64*t}")
        rb = "v44" if t < 8 else "v47"
        off = WQ_OFF + 32768 * ((t >> 2) & 1) + 4096 * (t & 3)
        a(f"ds_read_b64_tr_b16 v[{128+4*t}:{129+4*t}], {rb} offset:{off}")
        a(f"ds_read_b64_tr_b16 v[{130+4*t}:{131+4*t}], {rb} offset:{off+2048}")
    q_reads(0)
    for t in range(4):
        a(f"s_waitcnt lgkmcnt({3*(3-t)+3})")
        c = "0" if t == 0 else "v[232:235]"
        a(f"v_mfma_f32_16x16x32_bf16 v[232:235], v[{216+4*t}:{219+4*t}], v[{200+4*t}:{203+4*t}], {c}")
    for t in range(1, 5):
        q_reads(t)
    for t in range(16):
        ahead = min(4, 15 - t)
        a(f"s_waitcnt lgkmcnt({3*ahead})")
        acc = 192 + 4 * (t & 1)
        c = "0" if t < 2 else f"v[{acc}:{acc+3}]"
        a(f"v_mfma_f32_16x16x32_bf16 v[{acc}:{acc+3}], v[{128+4*t}:{131+4*t}], v[{64+4*t}:{67+4*t}], {c}")
        if t + 5 < 16:
            q_reads(t + 5)
    a(f"""s_lshl_b32 s6, s54, 1
    s_add_u32 s6, s6, s56
    s_mul_i32 s6, s6, {4*7168}
    s_lshl_b32 s7, s55, 8
    s_add_u32 s6, s6, s7
    s_lshl_b32 s7, s5, 6
    s_add_u32 s6, s6, s7
    s_add_u32 s6, s6, {WS_GU}
    s_movk_i32 s7, 7168
    v_mul_lo_u32 v58, v4, s7
    v_lshl_add_u32 v58, v3, 4, v58
    v_lshlrev_b32 v59, 7, v4
    v_lshl_add_u32 v59, v3, 3, v59
    s_lshl_b32 s7, s5, 5
    s_add_u32 s7, s7, {L_Q}
    v_add_u32 v59, s7, v59
    v_cmp_gt_u32 vcc, 4, v4
    s_and_saveexec_b64 s[62:63], vcc""")
    a.vmop(f"buffer_store_dwordx4 v[232:235], v58, {R(sWS)}, s6 offen sc1", "gu")
    a(f"""s_nop 4
    v_add_f32 v192, v192, v196
    v_add_f32 v193, v193, v197
    v_add_f32 v194, v194, v198
    v_add_f32 v195, v195, v199
    v_cvt_pk_bf16_f32 v192, v192, v193
    v_cvt_pk_bf16_f32 v193, v194, v195
    ds_write_b64 v59, v[192:193]
    s_mov_b64 exec, s[62:63]
    v_lshlrev_b32 v59, 7, v6
    v_lshl_add_u32 v59, v3, 4, v59
    v_add_u32 v59, {L_Q}, v59
    s_waitcnt lgkmcnt(0)
    s_barrier""")
    ts(a, 4)
    a("""ds_read_b128 v[64:67], v59
    ds_read_b128 v[68:71], v59 offset:64""")
    a(f"""s_lshl_b32 s6, s52, 17
    s_lshr_b32 s7, s3, 4
    s_lshl_b32 s7, s7, 14
    s_add_u32 s6, s6, s7
    s_lshl_b32 s7, s53, 2
    s_add_u32 s7, s7, s5
    s_lshl_b32 s7, s7, 10
    s_add_u32 s6, s6, s7
    s_and_b32 s7, s3, 15
    s_lshl_b32 s7, s7, 4
    s_add_u32 s6, s6, s7
    s_add_u32 s6, s6, {WS_QL}
    v_lshlrev_b32 v58, 15, v4
    v_lshl_add_u32 v58, v3, 8, v58
    s_mov_b32 s7, {f2u(QSCALE):#x}""")
    a.wait_vm("wuk", extra="lgkmcnt(0)")
    for t in range(2):
        for q in range(2):
            b = 12 + 8 * q + 4 * t
            c = "0" if t == 0 else f"v[{72+4*q}:{75+4*q}]"
            a(f"v_mfma_f32_16x16x32_bf16 v[{72+4*q}:{75+4*q}], v[{b}:{b+3}], v[{64+4*t}:{67+4*t}], {c}")
    a("""v_cmp_gt_u32 vcc, 4, v4
    s_and_saveexec_b64 s[62:63], vcc
    s_nop 7""")
    for i in range(8):
        a(f"v_mul_f32 v{72+i}, s7, v{72+i}")
    for i in range(4):
        a(f"v_cvt_pk_bf16_f32 v{72+i}, v{72+2*i}, v{73+2*i}")
    a.vmop(f"buffer_store_dwordx4 v[72:75], v58, {R(sWS)}, s6 offen sc1", "ql")
    a("s_mov_b64 exec, s[62:63]")
    ts(a, 5)
    ckv_dma(12, 12 + P2A)
    a.wait_vm("ql", "gu", "rst")
    a(f"""s_barrier
    s_cmp_lg_u32 s5, 0
    s_cbranch_scc1 NOSIG1
    v_mov_b32 v58, s2
    v_mov_b32 v59, 1
    v_cmp_eq_u32 vcc, 0, v1
    s_and_saveexec_b64 s[62:63], vcc
    buffer_store_byte v59, v58, {R(sDBG)}, 0 offen sc1
    s_mov_b64 exec, s[62:63]""")
    a.label("NOSIG1")
    ts(a, 6)
    ckv_dma(12 + P2A, 32)
    a("""v_and_b32 v7, 7, v4
    v_lshlrev_b32 v7, 1, v7
    s_lshl_b32 s6, s5, 5
    v_add_u32 v58, s6, v4
    v_lshlrev_b32 v58, 10, v58""")
    for tq in range(4):
        a(f"v_add_u32 v59, {4*tq}, v3\nv_xor_b32 v59, v59, v7\nv_lshl_add_u32 v{24+tq}, v59, 4, v58")
    a(f"v_add_u32 v28, {L_QL}, v31")
    a("""v_and_b32 v7, 1, v3
    v_lshl_add_u32 v7, v7, 2, v5
    v_lshlrev_b32 v7, 1, v7
    v_lshl_add_u32 v58, v2, 10, v56
    s_lshl_b32 s6, s5, 8
    v_add_u32 v58, s6, v58""")
    for n in range(8):
        a(f"v_xor_b32 v59, {2*n}, v7\nv_lshl_add_u32 v{32+n}, v59, 4, v58\nv_add_u32 v{8+n}, 0x10000, v{32+n}")
    a(f"""s_cmp_lg_u32 s5, 0
    s_cbranch_scc1 E1_DONE
    v_lshlrev_b32 v58, 2, v1
    s_mov_b32 s7, 0x01010101
    s_mov_b32 s6, {SPIN_MAX}""")
    a.label("E1_POLL")
    a(f"""buffer_load_dword v59, v58, {R(sDBG)}, 0 offen sc1
    s_waitcnt vmcnt(0)
    v_cmp_ne_u32 vcc, s7, v59
    s_cbranch_vccz E1_DONE
    s_sub_u32 s6, s6, 1
    s_cmp_eq_u32 s6, 0
    s_cbranch_scc1 E1_DONE
    s_sleep 1
    s_branch E1_POLL""")
    a.label("E1_DONE")
    a("s_barrier")
    ts(a, 7)
    a.vm = ["ckv"]
    a(f"""s_lshr_b32 s6, s57, 5          ; b
    s_lshl_b32 s6, s6, 1
    s_add_u32 s6, s6, s58
    s_lshl_b32 s6, s6, 14
    s_lshl_b32 s7, s5, 12
    s_add_u32 s6, s6, s7
    s_add_u32 s6, s6, {WS_QL}
    s_add_u32 s7, s6, 131072""")
    for dh in range(2):
        for tt in range(4):
            b = 128 + 16 * dh + 4 * tt
            a.vmop(f"buffer_load_dwordx4 v[{b}:{b+3}], v31, {R(sWS)}, s{6+dh} offen offset:{1024*tt} sc1", "qlr")
    a(f"""s_mul_i32 s6, s5, 7168
    s_lshl_b32 s7, s59, 8
    s_add_u32 s6, s6, s7
    s_add_u32 s6, s6, {WS_GU}
    v_lshlrev_b32 v58, 2, v1""")
    for km in range(8):
        a.vmop(f"buffer_load_dword v{160+km}, v58, {R(sWS)}, s6 offen sc1", "gur")
        if km < 7:
            a(f"s_add_u32 s6, s6, {4*7168}")
    a("""v_lshlrev_b32 v58, 1, v3
    v_xor_b32 v58, v58, v4
    v_lshlrev_b32 v58, 4, v58
    v_lshl_add_u32 v58, v3, 13, v58
    v_xor_b32 v59, 0x80, v58
    s_and_b32 s6, s4, 3
    s_lshl_b32 s6, s6, 7
    s_lshl_b32 s7, s5, 5
    s_add_u32 s6, s6, s7
    s_lshl_b32 s6, s6, 13
    s_lshl_b32 s7, s3, 8
    s_add_u32 s6, s6, s7""")
    for i in range(8):
        a.vmop(f"buffer_load_dwordx4 a[{4*i}:{4*i+3}], v{58+(i&1)}, {R(sWUV)}, s6 offen{nt('wuv')}", "wuv")
        if i < 7:
            a(f"s_add_u32 s6, s6, {4*8192}")
    a("""v_lshrrev_b32 v58, 5, v1
    v_and_b32 v59, 31, v1""")
    for q in range(4):
        a(f"""v_add_u32 v60, {2*q}, v58
        v_lshlrev_b32 v60, 1, v60
        v_xor_b32 v60, v60, v59
        v_lshlrev_b32 v60, 4, v60
        v_lshl_add_u32 v{168+q}, v58, 10, v60""")
    a("""s_lshl_b32 s6, s3, 17
    s_lshl_b32 s7, s5, 15
    s_add_u32 s6, s6, s7
    s_lshr_b32 s7, s4, 2
    s_lshl_b32 s7, s7, 9
    s_add_u32 s6, s6, s7""")
    for i in range(16):
        a.vmop(f"buffer_load_dwordx4 a[{32+4*i}:{35+4*i}], v{168+(i&3)}, {R(sWO)}, s6 offen{nt('wo')}", "wo")
        if i < 15:
            a("s_add_u32 s6, s6, 2048")
    a(f"""s_lshl_b32 s6, s5, 12
    v_add_u32 v58, s6, v28""")
    a.wait_vm("qlr")
    for tt in range(4):
        for k in range(4):
            x, y, o = 128 + 4 * tt + k, 144 + 4 * tt + k, 64 + 4 * tt + k
            a(f"""v_lshlrev_b32 v59, 16, v{x}
            v_lshlrev_b32 v60, 16, v{y}
            v_and_b32 v61, 0xffff0000, v{x}
            v_and_b32 v62, 0xffff0000, v{y}
            v_add_f32 v59, v59, v60
            v_add_f32 v61, v61, v62
            v_cvt_pk_bf16_f32 v{o}, v59, v61""")
        a(f"ds_write_b128 v58, v[{64+4*tt}:{67+4*tt}] offset:{1024*tt}")
    a("s_waitcnt lgkmcnt(0)\ns_barrier")
    ts(a, 8)
    for t in range(16):
        a(f"ds_read_b128 v[{64+4*t}:{67+4*t}], v28 offset:{1024*t}")
    a.wait_vm("gur")
    a(f"""v_add_f32 v160, v160, v162
    v_add_f32 v164, v164, v166
    v_add_f32 v161, v161, v163
    v_add_f32 v165, v165, v167
    v_add_f32 v160, v160, v164
    v_add_f32 v161, v161, v165
    v_mul_f32 v162, {f2u(-LOG2E):#x}, v160
    v_exp_f32 v162, v162
    v_and_b32 v163, 32, v1
    v_lshl_add_u32 v163, v5, 3, v163
    v_add_f32 v162, 1.0, v162
    v_rcp_f32 v162, v162
    v_bfe_u32 v164, v1, 4, 1
    v_lshl_add_u32 v163, v164, 2, v163
    v_add_u32 v163, v163, v6
    v_mul_f32 v160, v160, v162
    v_mul_f32 v160, v160, v161
    v_cvt_pk_bf16_f32 v160, v160, v160
    v_lshlrev_b32 v163, 1, v163
    s_lshl_b32 s6, s5, 7
    s_add_u32 s6, s6, {L_H1}
    v_add_u32 v163, s6, v163
    ds_write_b16 v163, v160""")
    for kb in range(2):
        for t in range(16):
            a(f"ds_read_b128 v[{128+4*t}:{131+4*t}], v{24+(t&3)} offset:{(t>>2)*256+kb*16384}")
        for t in range(16):
            a(f"s_waitcnt lgkmcnt({15-t})")
            c = "0" if t == 0 else f"v[{48+4*kb}:{51+4*kb}]"
            a(f"v_mfma_f32_16x16x32_bf16 v[{48+4*kb}:{51+4*kb}], v[{128+4*t}:{131+4*t}], v[{64+4*t}:{67+4*t}], {c}")
    ts(a, 9)
    a(f"""v_lshlrev_b32 v58, 4, v4       ; head*16
    s_lshl_b32 s6, s5, 2
    s_add_u32 s6, s6, {L_MX}
    v_add_u32 v59, s6, v58         ; MX[head][w]
    v_add_u32 v58, {L_MX}, v58
    s_nop 4
    v_max3_f32 v60, v48, v49, v50
    v_max3_f32 v60, v60, v51, v52
    v_max3_f32 v60, v60, v53, v54
    v_max_f32 v60, v60, v55""")
    xg_reduce(a, "v60", "v61", "v_max_f32")
    a(f"""ds_write_b32 v59, v60
    s_waitcnt lgkmcnt(0)
    s_barrier
    ds_read_b128 v[128:131], v58
    s_waitcnt lgkmcnt(0)
    v_max3_f32 v60, v128, v129, v130
    v_max_f32 v60, v60, v131        ; m""")
    for i in range(8):
        a(f"v_sub_f32 v{48+i}, v{48+i}, v60")
    for i in range(8):
        a(f"v_exp_f32 v{48+i}, v{48+i}")
    a("""s_nop 0
    v_add_f32 v61, v48, v49
    v_add_f32 v62, v50, v51
    v_add_f32 v63, v52, v53
    v_add_f32 v128, v54, v55
    v_add_f32 v61, v61, v62
    v_add_f32 v63, v63, v128
    v_add_f32 v61, v61, v63""")
    for i in range(4):
        a(f"v_cvt_pk_bf16_f32 v{48+i}, v{48+2*i}, v{49+2*i}")
    a(f"""s_lshl_b32 s6, s5, 10
    s_add_u32 s6, s6, {L_P}
    v_add_u32 v62, s6, v31
    ds_write_b128 v62, v[48:51]""")
    xg_reduce(a, "v61", "v63", "v_add_f32")
    a(f"""ds_write_b32 v59, v61 offset:{L_LS-L_MX}
    v_add_u32 v62, {L_P}, v31
    s_waitcnt lgkmcnt(0)
    s_barrier""")
    for u in range(4):
        a(f"ds_read_b128 v[{64+4*u}:{67+4*u}], v62 offset:{1024*u}")
    a(f"ds_read_b128 v[52:55], v58 offset:{L_LS-L_MX}")
    ts(a, 10)

    def pv_reads(u):
        base = 128 + 32 * (u & 1)
        ab = 32 if u < 2 else 8
        off = (u & 1) * 32768
        for n in range(8):
            a(f"ds_read_b64_tr_b16 v[{base+4*n}:{base+4*n+1}], v{ab+n} offset:{off}")
            a(f"ds_read_b64_tr_b16 v[{base+4*n+2}:{base+4*n+3}], v{ab+n} offset:{off+16384}")
    pv_reads(0)
    for u in range(4):
        if u < 3:
            pv_reads(u + 1)
        base = 128 + 32 * (u & 1)
        for n in range(8):
            rem = (16 if u < 3 else 0) + 14 - 2 * n
            a(f"s_waitcnt lgkmcnt({min(rem, 15)})")
            c = "0" if u == 0 else f"v[{80+4*n}:{83+4*n}]"
            a(f"v_mfma_f32_16x16x32_bf16 v[{80+4*n}:{83+4*n}], v[{base+4*n}:{base+4*n+3}], v[{64+4*u}:{67+4*u}], {c}")
    ts(a, 11)
    a("s_barrier")
    a(f"""v_add_f32 v52, v52, v53
    v_add_f32 v54, v54, v55
    v_add_f32 v61, v52, v54         ; L
    s_mov_b32 s61, 0xfffffffe
    s_lshr_b32 s7, s57, 5           ; b
    s_lshl_b32 s6, s58, 6
    s_add_u32 s6, s6, s7            ; (hg*16)*4 + b
    s_lshl_b32 s6, s6, 2
    s_and_b32 s7, s57, 3
    s_add_u32 s6, s6, s7
    s_lshl_b32 s6, s6, 3
    s_bfe_u32 s7, s57, 0x30002      ; (T>>2)&7 = s>>2
    s_add_u32 s6, s6, s7
    s_lshl_b32 s6, s6, 3
    s_add_u32 s6, s6, {WS_STATS}
    v_lshlrev_b32 v58, 10, v4       ; head * 1024
    v_min_u32 v60, s61, v60
    v_min_u32 v61, s61, v61""")
    a(f"""s_lshl_b32 s7, s58, 6
    s_add_u32 s7, s7, s5
    s_lshl_b32 s7, s7, 7
    s_add_u32 s7, s7, s57
    s_lshl_b32 s7, s7, 8
    s_add_u32 s7, s7, {WS_PART}
    v_lshlrev_b32 v59, 17, v4
    v_lshl_add_u32 v59, v3, 4, v59""")
    for np_ in range(4):
        b0 = 80 + 8 * np_
        a(f"""v_cvt_pk_bf16_f32 v{b0}, v{b0}, v{b0+1}
        v_cvt_pk_bf16_f32 v{b0+1}, v{b0+2}, v{b0+3}
        v_cvt_pk_bf16_f32 v{b0+2}, v{b0+4}, v{b0+5}
        v_cvt_pk_bf16_f32 v{b0+3}, v{b0+6}, v{b0+7}
        v_min_u32 v{b0}, s61, v{b0}
        v_min_u32 v{b0+1}, s61, v{b0+1}
        v_min_u32 v{b0+2}, s61, v{b0+2}
        v_min_u32 v{b0+3}, s61, v{b0+3}""")
        a.vmop(f"buffer_store_dwordx4 v[{b0}:{b0+3}], v59, {R(sWS)}, s7 offen offset:{64*np_} sc1", "part")
    a("""s_cmp_lg_u32 s5, 0
    s_cbranch_scc1 NOSTAT
    v_cmp_gt_u32 vcc, 16, v1
    s_and_saveexec_b64 s[62:63], vcc""")
    a(f"buffer_store_dwordx2 v[60:61], v58, {R(sWS)}, s6 offen sc1")
    a("s_mov_b64 exec, s[62:63]")
    a.label("NOSTAT")
    a(f"""s_lshl_b32 s6, s5, 13
    v_add_u32 v58, s6, v31
    s_lshl_b32 s6, s5, 14
    s_add_u32 s6, s6, {L_WO}
    v_add_u32 v59, s6, v31""")
    a.wait_vm("wuv", "wo")
    for i in range(8):
        a(f"ds_write_b128 v58, a[{4*i}:{4*i+3}] offset:{L_UV+1024*i}")
    for i in range(16):
        a(f"ds_write_b128 v59, a[{32+4*i}:{35+4*i}] offset:{1024*i}")
    a(f"""v_lshlrev_b32 v58, 7, v6
    v_lshl_add_u32 v58, v3, 4, v58
    v_add_u32 v58, {L_H1}, v58
    ds_read_b128 v[64:67], v58
    ds_read_b128 v[68:71], v58 offset:64""")
    for t in range(2):
        b = 72 + 4 * t
        a(f"ds_read_b64_tr_b16 v[{b}:{b+1}], v57 offset:{4096*t}")
        a(f"ds_read_b64_tr_b16 v[{b+2}:{b+3}], v57 offset:{4096*t+2048}")
    a(f"""s_lshl_b32 s6, s60, 1
    s_lshr_b32 s7, s5, 1
    s_add_u32 s6, s6, s7
    s_mul_i32 s6, s6, {SP_ROWS*128}
    s_add_u32 s7, s59, 128
    s_lshl_b32 s7, s7, 7
    s_add_u32 s6, s6, s7
    s_and_b32 s7, s5, 1
    s_lshl_b32 s7, s7, 6
    s_add_u32 s6, s6, s7
    s_add_u32 s6, s6, {WS_SP}
    s_mov_b32 s7, {16*SP_ROWS*128}
    v_mul_lo_u32 v63, v4, s7
    v_lshl_add_u32 v63, v3, 4, v63
    s_waitcnt lgkmcnt(0)
    v_mfma_f32_16x16x32_bf16 v[80:83], v[72:75], v[64:67], 0
    v_mfma_f32_16x16x32_bf16 v[80:83], v[76:79], v[68:71], v[80:83]
    v_cmp_gt_u32 vcc, 4, v4
    s_and_saveexec_b64 s[62:63], vcc
    s_nop 7
    v_min_u32 v80, s61, v80
    v_min_u32 v81, s61, v81
    v_min_u32 v82, s61, v82
    v_min_u32 v83, s61, v83
    buffer_store_dwordx4 v[80:83], v63, {R(sWS)}, s6 offen sc1
    s_mov_b64 exec, s[62:63]""")
    ts(a, 12)
    for q in range(2):
        a(f"""s_lshl_b32 s6, s5, 2
        s_add_u32 s6, s6, {2*q}
        v_xor_b32 v58, s6, v7
        v_lshl_add_u32 v58, v58, 4, v56
        v_lshl_add_u32 v{24+q}, v2, 8, v58""")
    for q in range(4):
        a(f"""s_lshl_b32 s6, s5, 3
        s_add_u32 s6, s6, {2*q}
        s_and_b32 s7, s6, 15
        s_and_b32 s6, s6, 16
        v_xor_b32 v58, s7, v7
        v_add_u32 v58, s6, v58
        v_lshl_add_u32 v58, v58, 4, v56
        v_lshl_add_u32 v58, v2, 9, v58
        v_add_u32 v{26+q}, {L_WO}, v58""")
    a(f"""v_lshlrev_b32 v30, 8, v6
    v_lshl_add_u32 v30, v3, 4, v30
    v_add_u32 v30, {L_CL}, v30""")
    a(f"""s_lshl_b32 s6, s3, 2
    s_add_u32 s6, s6, s5
    s_lshl_b32 s6, s6, 8
    s_add_u32 s6, s6, {WS_STATS}
    v_lshlrev_b32 v58, 6, v3
    s_mov_b32 s7, {SPIN_MAX}""")
    a.label("E2S_POLL")
    for i in range(4):
        a(f"buffer_load_dwordx4 v[{64+4*i}:{67+4*i}], v58, {R(sWS)}, s6 offen offset:{16*i} sc1")
    a("""s_waitcnt vmcnt(0)
    v_max3_u32 v59, v64, v65, v66""")
    for i in range(6):
        a(f"v_max3_u32 v59, v59, v{67+2*i}, v{68+2*i}")
    a("""v_max_u32 v59, v59, v79
    v_cmp_eq_u32 vcc, -1, v59
    s_cbranch_vccz E2S_DONE
    s_sub_u32 s7, s7, 1
    s_cmp_eq_u32 s7, 0
    s_cbranch_scc1 E2S_DONE
    s_sleep 1
    s_branch E2S_POLL""")
    a.label("E2S_DONE")
    a(f"""s_lshl_b32 s6, s3, 2
    s_and_b32 s7, s4, 3
    s_add_u32 s6, s6, s7
    s_lshl_b32 s6, s6, 2
    s_add_u32 s6, s6, s5
    s_lshl_b32 s6, s6, 13
    s_add_u32 s6, s6, {WS_PART}
    s_add_u32 s61, s6, 4096
    s_mov_b32 s7, {SPIN_MAX}""")
    a.label("E2P_POLL")
    for i in range(8):
        a(f"buffer_load_dwordx4 v[{80+4*i}:{83+4*i}], v31, {R(sWS)}, s{6 if i < 4 else 61} offen offset:{1024*(i&3)} sc1")
    ts(a, 13)
    a("""v_max3_f32 v59, v64, v66, v68
    v_max3_f32 v59, v59, v70, v72
    v_max3_f32 v59, v59, v74, v76
    v_max_f32 v59, v59, v78""")
    xg_reduce(a, "v59", "v60", "v_max_f32")
    for i in range(8):
        a(f"v_sub_f32 v{112+i}, v{64+2*i}, v59")
    for i in range(8):
        a(f"v_exp_f32 v{112+i}, v{112+i}")
    a("s_nop 0\nv_mul_f32 v60, v112, v65")
    for i in range(1, 8):
        a(f"v_fmac_f32 v60, v{112+i}, v{65+2*i}")
    xg_reduce(a, "v60", "v61", "v_add_f32")
    a("v_rcp_f32 v60, v60\ns_nop 0")
    for i in range(8):
        a(f"v_mul_f32 v{112+i}, v{112+i}, v60")
    a("""s_waitcnt vmcnt(0)
    v_max3_u32 v59, v80, v81, v82""")
    for i in range(14):
        a(f"v_max3_u32 v59, v59, v{83+2*i}, v{84+2*i}")
    a("""v_max_u32 v59, v59, v111
    v_cmp_eq_u32 vcc, -1, v59
    s_cbranch_vccz E2P_DONE
    s_sub_u32 s7, s7, 1
    s_cmp_eq_u32 s7, 0
    s_cbranch_scc1 E2P_DONE
    s_branch E2P_POLL""")
    a.label("E2P_DONE")
    ts(a, 14)
    for i in range(8):
        for k in range(4):
            src = 80 + 4 * i + k
            a(f"v_lshlrev_b32 v59, 16, v{src}\nv_and_b32 v60, 0xffff0000, v{src}")
            if i == 0:
                a(f"v_mul_f32 v{120+2*k}, v112, v59\nv_mul_f32 v{121+2*k}, v112, v60")
            else:
                a(f"v_fmac_f32 v{120+2*k}, v{112+i}, v59\nv_fmac_f32 v{121+2*k}, v{112+i}, v60")
    for k in range(8):
        xg_reduce(a, f"v{120+k}", "v59", "v_add_f32")
    for k in range(4):
        a(f"v_cvt_pk_bf16_f32 v{120+k}, v{120+2*k}, v{121+2*k}")
    a(f"""s_lshl_b32 s6, s5, 8
    s_add_u32 s6, s6, {L_CL}
    v_lshlrev_b32 v59, 4, v4
    v_add_u32 v59, s6, v59
    ds_write_b128 v59, v[120:123]
    s_waitcnt lgkmcnt(0)
    s_barrier""")
    for t in range(4):
        a(f"ds_read_b128 v[{64+4*t}:{67+4*t}], v30 offset:{64*t}")
    for t in range(4):
        for q in range(2):
            b = 128 + 8 * t + 4 * q
            a(f"ds_read_b64_tr_b16 v[{b}:{b+1}], v{24+q} offset:{L_UV+8192*t}")
            a(f"ds_read_b64_tr_b16 v[{b+2}:{b+3}], v{24+q} offset:{L_UV+8192*t+4096}")
    for t in range(4):
        for q in range(2):
            b = 128 + 8 * t + 4 * q
            a(f"s_waitcnt lgkmcnt({14 - 4*t - 2*q})")
            c = "0" if t == 0 else f"v[{80+4*q}:{83+4*q}]"
            a(f"v_mfma_f32_16x16x32_bf16 v[{80+4*q}:{83+4*q}], v[{b}:{b+3}], v[{64+4*t}:{67+4*t}], {c}")
    for t in range(4):
        for q in range(4):
            b = 128 + 16 * t + 4 * q
            if t < 2:
                continue
            a(f"ds_read_b64_tr_b16 v[{b}:{b+1}], v{26+q} offset:{16384*t}")
            a(f"ds_read_b64_tr_b16 v[{b+2}:{b+3}], v{26+q} offset:{16384*t+8192}")
    a(f"""v_lshlrev_b32 v59, 8, v4
    v_lshl_add_u32 v59, v3, 4, v59
    s_lshl_b32 s6, s5, 6
    s_add_u32 s6, s6, {L_CT}
    v_add_u32 v59, s6, v59
    v_cmp_gt_u32 vcc, 4, v4
    s_nop 2
    v_cvt_pk_bf16_f32 v80, v80, v81
    v_cvt_pk_bf16_f32 v81, v82, v83
    v_cvt_pk_bf16_f32 v82, v84, v85
    v_cvt_pk_bf16_f32 v83, v86, v87
    s_and_saveexec_b64 s[62:63], vcc
    ds_write_b128 v59, v[80:83]
    s_mov_b64 exec, s[62:63]""")
    for t in range(2):
        for q in range(4):
            b = 128 + 16 * t + 4 * q
            a(f"ds_read_b64_tr_b16 v[{b}:{b+1}], v{26+q} offset:{16384*t}")
            a(f"ds_read_b64_tr_b16 v[{b+2}:{b+3}], v{26+q} offset:{16384*t+8192}")
    a("s_waitcnt lgkmcnt(0)\ns_barrier")
    a(f"v_add_u32 v30, {L_CT-L_CL}, v30")
    for t in range(4):
        a(f"ds_read_b128 v[{64+4*t}:{67+4*t}], v30 offset:{64*t}")
    for t in range(4):
        a(f"s_waitcnt lgkmcnt({3-t})")
        for q in range(4):
            b = 128 + 16 * t + 4 * q
            c = "0" if t == 0 else f"v[{80+4*q}:{83+4*q}]"
            a(f"v_mfma_f32_16x16x32_bf16 v[{80+4*q}:{83+4*q}], v[{b}:{b+3}], v[{64+4*t}:{67+4*t}], {c}")
    a(f"""s_lshr_b32 s6, s4, 2
    s_lshl_b32 s6, s6, 3
    s_lshl_b32 s7, s5, 1
    s_add_u32 s6, s6, s7
    s_mul_i32 s6, s6, {SP_ROWS*128}
    s_lshl_b32 s7, s3, 2
    s_and_b32 s61, s4, 3
    s_add_u32 s7, s7, s61
    s_lshl_b32 s7, s7, 7
    s_add_u32 s6, s6, s7
    s_add_u32 s6, s6, {WS_SP}
    s_add_u32 s7, s6, {SP_ROWS*128}
    s_mov_b32 s61, 0xfffffffe
    v_cmp_gt_u32 vcc, 4, v4
    s_and_saveexec_b64 s[62:63], vcc
    s_nop 2""")
    for i in range(16):
        a(f"v_min_u32 v{80+i}, s61, v{80+i}")
    a(f"""buffer_store_dwordx4 v[80:83], v63, {R(sWS)}, s6 offen sc1
    buffer_store_dwordx4 v[84:87], v63, {R(sWS)}, s6 offen offset:64 sc1
    buffer_store_dwordx4 v[88:91], v63, {R(sWS)}, s7 offen sc1
    buffer_store_dwordx4 v[92:95], v63, {R(sWS)}, s7 offen offset:64 sc1
    s_mov_b64 exec, s[62:63]""")
    ts(a, 15)
    a(f"""s_cmp_ge_u32 s2, 64
    s_cbranch_scc1 K_FIN
    v_lshrrev_b32 v2, 3, v0
    v_and_b32 v7, 7, v0            ; chunk
    s_mul_i32 s6, s2, {SP_ROWS*128}
    s_add_u32 s6, s6, {WS_SP}
    v_lshlrev_b32 v58, 4, v0       ; tid*16
    s_lshl_b32 s7, s2, 6
    v_lshlrev_b32 v59, 1, v0
    buffer_load_ushort v28, v59, {R(sX)}, s7 offen
    v_mov_b32 v24, 0
    v_mov_b32 v25, 0
    v_mov_b32 v26, 0
    v_mov_b32 v27, 0
    s_add_u32 s52, s6, 4096
    s_add_u32 s53, s6, 8192
    s_add_u32 s54, s6, 12288
    s_add_u32 s55, s6, 16384
    v_cmp_gt_u32 s[56:57], 28, v2
    s_mov_b32 s58, {SPIN_MAX}""")
    a.label("E3_POLL")
    a(f"""buffer_load_dwordx4 v[8:11], v58, {R(sWS)}, s6 offen sc1
    buffer_load_dwordx4 v[12:15], v58, {R(sWS)}, s52 offen sc1
    buffer_load_dwordx4 v[16:19], v58, {R(sWS)}, s53 offen sc1
    buffer_load_dwordx4 v[20:23], v58, {R(sWS)}, s54 offen sc1
    s_mov_b64 exec, s[56:57]
    buffer_load_dwordx4 v[24:27], v58, {R(sWS)}, s55 offen sc1
    s_mov_b64 exec, -1
    s_waitcnt vmcnt(0)
    v_max3_u32 v29, v8, v9, v10""")
    for i in range(8):
        a(f"v_max3_u32 v29, v29, v{11+2*i}, v{12+2*i}")
    a("""v_max_u32 v29, v29, v27
    v_cmp_eq_u32 vcc, -1, v29
    s_cbranch_vccz E3_DONE
    s_sub_u32 s58, s58, 1
    s_cmp_eq_u32 s58, 0
    s_cbranch_scc1 E3_DONE
    s_branch E3_POLL""")
    a.label("E3_DONE")
    ts(a, 16)
    for i in range(4):
        a(f"v_add_f32 v{8+i}, v{8+i}, v{12+i}\nv_add_f32 v{16+i}, v{16+i}, v{20+i}\nv_add_f32 v{8+i}, v{8+i}, v{16+i}")
    for r in list(range(8, 12)) + list(range(24, 28)):
        a(f"s_nop 1\nv_add_f32_dpp v{r}, v{r}, v{r} row_ror:8 row_mask:0xf bank_mask:0xf")
        xg_reduce(a, f"v{r}", "v29", "v_add_f32")
    L_R = L_QL
    a(f"""s_lshl_b32 s6, s5, 8
    s_add_u32 s6, s6, {L_R}
    v_lshlrev_b32 v30, 4, v7
    v_add_u32 v30, s6, v30
    v_cmp_gt_u32 vcc, 8, v1
    s_and_saveexec_b64 s[62:63], vcc
    ds_write_b128 v30, v[8:11]
    ds_write_b128 v30, v[24:27] offset:128
    s_mov_b64 exec, s[62:63]
    s_waitcnt lgkmcnt(0)
    s_barrier
    v_cmp_gt_u32 vcc, 32, v0
    s_and_saveexec_b64 s[62:63], vcc
    s_cbranch_execz K_FIN
    v_lshlrev_b32 v30, 2, v0
    v_add_u32 v30, {L_R}, v30""")
    for w in range(4):
        a(f"ds_read_b32 v{8+w}, v30 offset:{256*w}\nds_read_b32 v{12+w}, v30 offset:{256*w+128}")
    a(f"""s_waitcnt lgkmcnt(0)
    v_add_f32 v8, v8, v9
    v_add_f32 v10, v10, v11
    v_add_f32 v8, v8, v10           ; s
    v_add_f32 v12, v12, v13
    v_add_f32 v14, v14, v15
    v_add_f32 v12, v12, v14         ; ffn
    v_mul_f32 v13, {f2u(-LOG2E):#x}, v12
    v_exp_f32 v13, v13
    s_nop 0
    v_add_f32 v13, 1.0, v13
    v_rcp_f32 v13, v13
    s_nop 0
    v_mul_f32 v12, v12, v13         ; silu(ffn)
    v_lshlrev_b32 v28, 16, v28
    v_fmac_f32 v28, v8, v12
    v_cvt_pk_bf16_f32 v28, v28, v28
    buffer_store_short v28, v59, {R(sOUT)}, s7 offen""")
    a.label("K_FIN")
    if TS:
        a("s_mov_b64 exec, -1\ns_waitcnt vmcnt(0)")
        ts(a, 17)
        a(f"""s_waitcnt lgkmcnt(0)
        s_cmp_lg_u32 s5, 0
        s_cbranch_scc1 K_END
        v_mov_b32 v250, 0""")
        for p in range(18):
            a(f"v_writelane_b32 v250, s{64+2*p}, {p}")
        a("v_writelane_b32 v250, s100, 30\nv_writelane_b32 v250, s101, 31")
        a(f"""s_lshl_b32 s6, s2, 7
        s_add_u32 s6, s6, {WS_TS}
        v_lshlrev_b32 v251, 2, v1
        v_cmp_gt_u32 vcc, 32, v1
        s_and_saveexec_b64 s[62:63], vcc
        buffer_store_dword v250, v251, {R(sWS)}, s6 offen""")
    a.label("K_END")
    a("s_endpgm")
    return a.text(), name, 256, lds


def main():
    ref = open(f"cdna_kernels/{NAME}.s.ref").read()
    head = []
    for line in ref.split("\n"):
        if line.startswith("; @launch") or line.startswith("; Override") or line.startswith("; grid="):
            continue
        if line.startswith(";"):
            head.append(line)
        else:
            break
    txt, name, grid, lds = fused()
    out = "\n".join(head) + "\n"
    if DIAG:
        out += f"; @launch kernel=fused_kernel grid=({grid},1,1) block=(256,1,1) lds={lds}\n"
        out += f"; @launch kernel={name} grid=(1,1,1) block=(256,1,1) lds=0\n"
        txt = txt.replace(name, "fused_kernel")
    else:
        out += f"; @launch grid=({grid},1,1) block=(256,1,1) lds={lds}\n"
    out += '.amdgcn_target "amdgcn-amd-amdhsa--gfx950"\n.text\n'
    out += txt
    if DIAG:
        order = [0, 1, 3, 4, 6, 7, 8, 9, 11, 12, 13, 14, 15, 16, 17]
        p = A()
        p.raw(f".globl {name}\n.p2align 8\n.type {name},@function\n{name}:")
        p("""s_load_dwordx4 s[4:7], s[0:1], 88
        s_cmp_lg_u32 s2, 0
        s_cbranch_scc1 P_END
        s_waitcnt lgkmcnt(0)""")
        srd(p, 8, 4, 256)
        srd(p, 12, 6, WS_BYTES)
        p(f"""v_lshlrev_b32 v1, 7, v0
        s_mov_b32 s16, {WS_TS}
        buffer_load_dword v2, v1, s[12:15], s16 offen
        s_waitcnt vmcnt(0)
        v_not_b32 v2, v2
        v_mov_b32 v3, 0
        buffer_atomic_umax v2, v3, s[8:11], 0 offen""")
        for i, st in enumerate(order):
            p(f"""buffer_load_dword v2, v1, s[12:15], s16 offen offset:{4*st}
            s_waitcnt vmcnt(0)
            v_mov_b32 v3, {4*(i+1)}""")
            if st == 16:
                p("v_cmp_gt_u32 vcc, 64, v0\ns_and_saveexec_b64 s[18:19], vcc")
            p("buffer_atomic_umax v2, v3, s[8:11], 0 offen")
            if st == 16:
                p("s_mov_b64 exec, s[18:19]")
        p.raw("P_END:")
        p("s_endpgm")
        out += p.text()
    out += '.section .rodata,"a"\n'
    if DIAG:
        out += f""".p2align 6
.amdhsa_kernel {name}
  .amdhsa_next_free_vgpr 8
  .amdhsa_next_free_sgpr 32
  .amdhsa_accum_offset 8
  .amdhsa_group_segment_fixed_size 0
  .amdhsa_kernarg_size 104
  .amdhsa_user_sgpr_count 2
  .amdhsa_user_sgpr_kernarg_segment_ptr 1
  .amdhsa_system_sgpr_workgroup_id_x 1
.end_amdhsa_kernel
"""
        name = "fused_kernel"
    out += f""".p2align 6
.amdhsa_kernel {name}
  .amdhsa_next_free_vgpr 512
  .amdhsa_next_free_sgpr 102
  .amdhsa_accum_offset 256
  .amdhsa_group_segment_fixed_size 0
  .amdhsa_kernarg_size 104
  .amdhsa_user_sgpr_count 2
  .amdhsa_user_sgpr_kernarg_segment_ptr 1
  .amdhsa_system_sgpr_workgroup_id_x 1
.end_amdhsa_kernel
"""
    dst = sys.argv[1] if len(sys.argv) > 1 else f"cdna_kernels/{NAME}.s"
    open(dst, "w").write(out)
    print("wrote", dst, len(out))


if __name__ == "__main__":
    main()
```

```python
import sys
import os
import struct

NAME = "recurrent_scan__compressed_kv_cla__swiglu_ffn__decode"

WS_QL = 0x000000
WS_GU = 0x040000
WS_STATS = 0x090000
WS_SP = 0x100000
WS_PART = 0x400000
WS_TS = 0x8000000
WS_BYTES = 0x10000000
SP_ROWS = 156

QSCALE = (128 ** -0.5) * 1.4426950408889634
LOG2E = 1.4426950408889634
DIAG = bool(os.environ.get("DIAG"))
TS = bool(os.environ.get("TS")) or DIAG
SPIN_MAX = 40000
NT = set(os.environ.get("NT", "").split(","))


def nt(tag):
    return " nt" if tag in NT or "all" in NT else ""


PF = os.environ.get("PF", "")
PFN = int(os.environ.get("PFN", "16"))
PFW = int(os.environ.get("PFW", "0"))
P2A = 8
ROT = os.environ.get("ROT", "cwq")
NC0 = int(os.environ.get("NC0", "16"))
W1 = int(os.environ.get("W1", "10"))
W2 = int(os.environ.get("W2", "6"))
W3 = int(os.environ.get("W3", "2"))
MAP = int(os.environ.get("MAP", "1"))


def f2u(x):
    return struct.unpack("<I", struct.pack("<f", x))[0]


class A:
    def __init__(self):
        self.l = []
        self.vm = []

    def __call__(self, s):
        for line in s.strip("\n").split("\n"):
            line = line.strip()
            if line:
                self.l.append("    " + line)

    def label(self, s):
        self.l.append(s + ":")

    def raw(self, s):
        self.l.append(s)

    def text(self):
        return "\n".join(self.l) + "\n"

    def vmop(self, s, tag):
        self(s)
        self.vm.append(tag)

    def wait_vm(self, *tags, extra=""):
        last = max(i for i, t in enumerate(self.vm) if t in tags)
        n = len(self.vm) - 1 - last
        assert n <= 63, n
        self(f"s_waitcnt vmcnt({n}) {extra}")


def srd(a, d, lo, nbytes):
    a(f"""s_mov_b32 s{d}, s{lo}
    s_mov_b32 s{d+1}, s{lo+1}
    s_mov_b32 s{d+2}, {nbytes}
    s_mov_b32 s{d+3}, 0x00020000""")


def ts(a, p):
    if TS:
        a(f"s_memrealtime s[{64+2*p}:{65+2*p}]")


def xg_reduce(a, v, t, op):
    a(f"""v_mov_b32 {t}, {v}
    s_nop 1
    v_permlane16_swap_b32 {v}, {t}
    s_nop 1
    {op} {v}, {v}, {t}
    v_mov_b32 {t}, {v}
    s_nop 1
    v_permlane32_swap_b32 {v}, {t}
    s_nop 1
    {op} {v}, {v}, {t}""")


def wave_sum(a, v, t):
    for r in (8, 4, 2, 1):
        a(f"s_nop 1\nv_add_f32_dpp {v}, {v}, {v} row_ror:{r} row_mask:0xf bank_mask:0xf")
    xg_reduce(a, v, t, "v_add_f32")


sX, sCKV, sWQ, sWUK, sWUV, sWO, sFF, sWS, sDN, sOUT, sDBG = 8, 12, 16, 20, 24, 28, 32, 36, 40, 44, 48


def R(d):
    return f"s[{d}:{d+3}]"


def kern(part):
    a = A()
    name = "k" + part.lower() + "_kernel"
    a.raw(f".globl {name}")
    a.raw(".p2align 8")
    a.raw(f".type {name},@function")
    a.label(name)
    L_QL = 131072
    L_P = L_QL + 16384
    L_Q = L_P
    L_X = L_P + 4096
    L_MX, L_LS, L_CL, L_CT, L_H1 = L_X, L_X + 256, L_X + 1024, L_X + 2048, L_X + 3072
    L_DN = L_X + 4096
    lds = L_DN + 8192
    WQ_OFF, FF_OFF = 12288, 28672
    L_UV, L_WO = 0, 32768
    if TS:
        a("s_getpc_b64 s[100:101]")
    a(f"""s_load_dwordx16 s[64:79], s[0:1], 0
    s_load_dwordx8 s[80:87], s[0:1], 64
    s_load_dwordx2 s[88:89], s[0:1], 96
    s_cmp_ge_u32 s2, 256
    s_cbranch_scc1 {part}_END
    v_and_b32 v1, 63, v0
    v_lshrrev_b32 v2, 6, v0
    s_and_b32 s3, s2, 7
    v_readfirstlane_b32 s5, v2
    s_lshr_b32 s6, s2, 3
    s_and_b32 s7, s6, 3
    s_lshl_b32 s7, s7, 3
    s_or_b32 s3, s3, s7            ; h
    s_lshr_b32 s4, s2, 5           ; j
    s_and_b32 s52, s4, 1           ; dh
    s_lshr_b32 s53, s4, 1          ; cs
    s_min_u32 s6, s2, 223
    s_and_b32 s54, s6, 3           ; ks
    s_lshr_b32 s7, s6, 2           ; cb 0..55
    s_cmp_ge_u32 s7, 28
    s_cselect_b32 s56, 1, 0        ; mat
    s_mul_i32 s55, s56, 28
    s_sub_u32 s55, s7, s55         ; cbk
    s_lshr_b32 s59, s6, 3          ; fs 0..27
    s_and_b32 s60, s6, 7           ; ms 0..7
    s_lshr_b32 s6, s2, 3
    s_and_b32 s58, s6, 1           ; hg
    s_lshr_b32 s6, s2, 4
    s_lshl_b32 s6, s6, 3
    s_and_b32 s57, s2, 7
    s_or_b32 s57, s57, s6          ; T 0..127
    v_lshrrev_b32 v3, 4, v1        ; g
    v_and_b32 v4, 15, v1           ; i16
    v_bfe_u32 v5, v1, 2, 2         ; r
    v_and_b32 v6, 3, v1            ; c'
    v_lshlrev_b32 v31, 4, v1       ; l*16
    s_waitcnt lgkmcnt(0)""")
    srd(a, sX, 64, 4096)
    srd(a, sWQ, 68, 4194304)
    a("""s_cmp_eq_u32 s56, 1
    s_cselect_b32 s78, s80, s78
    s_cselect_b32 s79, s81, s79""")
    srd(a, sFF, 78, 1835008)
    srd(a, sWUK, 70, 4194304)
    srd(a, sWS, 88, WS_BYTES)
    srd(a, sDN, 82, 1835008)
    srd(a, sCKV, 66, 16777216)
    srd(a, sWUV, 72, 4194304)
    srd(a, sWO, 74, 4194304)
    srd(a, sOUT, 84, 4096)
    srd(a, sDBG, 86, 256)
    ts(a, 0 if part == 'A' else 7)
    if part == 'A':
        part_a(a, locals())
    else:
        part_b(a, locals())
    return a.text(), name, 256, lds


def part_a(a, env):
    g = env
    L_QL, L_P, L_Q, L_X, L_MX, L_LS, L_CL, L_CT, L_H1, L_DN, WQ_OFF, FF_OFF, L_UV, L_WO = [g[k] for k in 'L_QL L_P L_Q L_X L_MX L_LS L_CL L_CT L_H1 L_DN WQ_OFF FF_OFF L_UV L_WO'.split()]

    def prefetch(dst):
        a(f"""s_lshl_b32 s6, s57, 17
        s_lshl_b32 s7, s58, 16
        s_add_u32 s6, s6, s7
        s_mul_i32 s7, s5, {PFN*1024}
        s_add_u32 s6, s6, s7""")
        for i in range(PFN):
            if i and i % 4 == 0:
                a("s_add_u32 s6, s6, 4096")
            a.vmop(f"buffer_load_dwordx4 {dst}[{4*(i%16)}:{4*(i%16)+3}], v31, {R(sCKV)}, s6 offen offset:{1024*(i&3)}", "pf")
        if PFW:
            for sr in (sWUV, sWO):
                a("s_lshl_b32 s6, s2, 14\ns_lshl_b32 s7, s5, 12\ns_add_u32 s6, s6, s7")
                for i in range(4):
                    a.vmop(f"buffer_load_dwordx4 {dst}[{4*i}:{4*i+3}], v31, {R(sr)}, s6 offen offset:{1024*i}", "pf")
    if MAP:
        a("""s_mov_b32 s59, s3
        s_mov_b32 s60, s4
        s_and_b32 s6, s2, 7            ; x
        s_lshr_b32 s7, s2, 5           ; p
        s_bfe_u32 s53, s2, 0x20003
        s_add_u32 s3, s6, s7
        s_and_b32 s3, s3, 3
        s_lshl_b32 s3, s3, 3
        s_add_u32 s3, s3, s7           ; h = p + 8*((x+p)&3)
        s_lshr_b32 s6, s6, 2
        s_xor_b32 s6, s6, s7
        s_and_b32 s52, s6, 1           ; dh""")
    else:
        a("s_mov_b32 s59, s3\ns_mov_b32 s60, s4")
    a("s_lshl_b32 s6, s5, 10")
    a.vmop(f"buffer_load_dwordx4 v[8:11], v31, {R(sX)}, s6 offen", "x")
    a(f"""v_lshrrev_b32 v7, 3, v1        ; l>>3
    v_and_b32 v2, 7, v1
    v_lshlrev_b32 v28, 1, v3
    v_xor_b32 v2, v2, v28
    v_lshlrev_b32 v2, 4, v2
    v_lshl_add_u32 v29, v7, 13, v2 ; w_q voff
    s_movk_i32 s6, 3584
    v_mul_lo_u32 v28, v7, s6
    v_add_u32 v28, v28, v2
    v_lshl_add_u32 v30, v7, 10, v2
    s_lshl_b32 s6, s5, 20
    s_lshl_b32 s7, s3, 8
    s_add_u32 s6, s6, s7
    s_lshl_b32 s7, s52, 7
    s_add_u32 s6, s6, s7
    s_lshl_b32 s7, s5, 15
    s_add_u32 m0, s7, {WQ_OFF}""")
    if "q" in ROT:
        a("s_mov_b32 s61, m0\ns_lshl_b32 s60, s53, 12")
        for i in range(16):
            a(f"""s_add_u32 m0, s61, s60
            s_lshl_b32 s7, s60, 6
            s_add_u32 s7, s7, s6""")
            a.vmop(f"buffer_load_dwordx4 v29, {R(sWQ)}, s7 offen{nt('wq')} lds", "wq")
            if i < 15:
                a("s_add_u32 s60, s60, 1024\ns_and_b32 s60, s60, 16383")
        a("s_lshr_b32 s60, s2, 5")
    else:
        for i in range(16):
            a.vmop(f"s_nop 0\nbuffer_load_dwordx4 v29, {R(sWQ)}, s6 offen{nt('wq')} lds", "wq")
            if i < 15:
                a(f"s_add_u32 s6, s6, {8*8192}\ns_add_u32 m0, m0, 1024")
    a(f"""s_lshl_b32 s6, s54, 7
    s_lshl_b32 s7, s5, 5
    s_add_u32 s6, s6, s7
    s_mul_i32 s6, s6, 3584
    s_lshl_b32 s7, s55, 7
    s_add_u32 s6, s6, s7
    s_lshl_b32 s7, s5, 15
    s_add_u32 m0, s7, {FF_OFF}""")
    for i in range(4):
        a.vmop(f"s_nop 0\nbuffer_load_dwordx4 v28, {R(sFF)}, s6 offen{nt('ff')} lds", "ff")
        if i < 3:
            a(f"s_add_u32 s6, s6, {8*3584}\ns_add_u32 m0, m0, 1024")
    a(f"""v_lshrrev_b32 v7, 2, v4
    v_and_b32 v2, 3, v4
    v_lshl_add_u32 v7, v7, 3, v2
    v_lshlrev_b32 v7, 13, v7
    v_lshl_add_u32 v7, v3, 4, v7
    s_lshl_b32 s6, s53, 7
    s_lshl_b32 s7, s5, 5
    s_add_u32 s6, s6, s7
    s_lshl_b32 s6, s6, 13
    s_lshl_b32 s7, s3, 8
    s_add_u32 s6, s6, s7
    s_lshl_b32 s7, s52, 7
    s_add_u32 s6, s6, s7
    s_add_u32 s7, s6, 32768""")
    for q in range(2):
        for t in range(2):
            b = 12 + 8 * q + 4 * t
            a.vmop(f"buffer_load_dwordx4 v[{b}:{b+3}], v7, {R(sWUK)}, s{6+q} offen offset:{64*t}{nt('wuk')}", "wuk")
    a(f"""v_mov_b32 v40, -1
    v_mov_b32 v41, -1
    v_mov_b32 v42, -1
    v_mov_b32 v43, -1
    v_lshlrev_b32 v7, 4, v0        ; tid*16
    s_lshl_b32 s6, s59, 2
    s_and_b32 s7, s60, 3
    s_add_u32 s6, s6, s7           ; h*4+cj
    s_lshl_b32 s6, s6, 15
    s_lshr_b32 s7, s60, 2
    s_lshl_b32 s7, s7, 14
    s_add_u32 s6, s6, s7
    s_add_u32 s6, s6, {WS_PART}""")
    for i in range(4):
        a.vmop(f"buffer_store_dwordx4 v[40:43], v7, {R(sWS)}, s6 offen sc1", "rst")
        if i < 3:
            a("s_add_u32 s6, s6, 4096")
    a(f"""s_mul_i32 s6, s2, 4992
    s_mul_i32 s7, s5, 1248
    s_add_u32 s6, s6, s7
    s_add_u32 s6, s6, {WS_SP}""")
    a.vmop(f"buffer_store_dwordx4 v[40:43], v31, {R(sWS)}, s6 offen sc1", "rst")
    a("""v_cmp_gt_u32 vcc, 14, v1
    s_and_saveexec_b64 s[62:63], vcc""")
    a.vmop(f"buffer_store_dwordx4 v[40:43], v31, {R(sWS)}, s6 offen offset:1024 sc1", "rst")
    a(f"""s_lshl_b32 s6, s59, 10
    s_lshl_b32 s7, s60, 7
    s_add_u32 s6, s6, s7
    s_lshl_b32 s7, s5, 5
    s_add_u32 s6, s6, s7
    s_add_u32 s6, s6, {WS_STATS}
    v_cmp_gt_u32 vcc, 2, v1
    s_and_b64 exec, exec, vcc""")
    a.vmop(f"buffer_store_dwordx4 v[40:43], v31, {R(sWS)}, s6 offen sc1", "rst")
    a("s_mov_b64 exec, s[62:63]")
    if PF == 'early':
        prefetch('a')
    ts(a, 1)
    a(f"""v_lshl_add_u32 v2, v3, 2, v5   ; rowl
    v_and_b32 v7, 1, v6
    v_lshrrev_b32 v44, 1, v6
    v_lshlrev_b32 v7, 3, v7
    v_lshl_add_u32 v56, v44, 4, v7 ; cc
    v_and_b32 v7, 1, v3
    v_lshlrev_b32 v7, 1, v7
    v_lshrrev_b32 v44, 1, v5
    v_add_u32 v7, v7, v44
    v_lshlrev_b32 v7, 1, v7        ; f3
    s_lshl_b32 s6, s5, 1
    v_xor_b32 v7, s6, v7
    v_lshl_add_u32 v7, v7, 4, v56
    v_lshl_add_u32 v44, v2, 7, v7
    v_add_u32 v47, 0x10000, v44
    v_add_u32 v57, {L_DN}, v44
    v_lshlrev_b32 v45, 10, v6
    v_lshl_add_u32 v45, v3, 4, v45
    v_add_u32 v45, {L_X}, v45
    v_lshrrev_b32 v46, 2, v1
    v_lshlrev_b32 v46, 6, v46
    v_and_b32 v7, 1, v6
    v_lshl_add_u32 v46, v7, 5, v46
    v_lshrrev_b32 v7, 1, v6
    v_lshl_add_u32 v46, v7, 3, v46
    s_lshl_b32 s6, s5, 10
    s_add_u32 s6, s6, {L_X}
    v_add_u32 v46, s6, v46""")
    a.wait_vm("x")
    ts(a, 2)
    for i in range(4):
        a(f"v_lshlrev_b32 v{48+2*i}, 16, v{8+i}\nv_and_b32 v{49+2*i}, 0xffff0000, v{8+i}")
    a("""v_add_f32 v58, v48, v49
    v_add_f32 v59, v50, v51
    v_add_f32 v60, v52, v53
    v_add_f32 v61, v54, v55
    v_add_f32 v58, v58, v59
    v_add_f32 v60, v60, v61
    v_add_f32 v58, v58, v60""")
    wave_sum(a, "v58", "v59")
    a(f"v_mul_f32 v58, {f2u(1.0/512):#x}, v58")
    for i in range(8):
        a(f"v_sub_f32 v{48+i}, v{48+i}, v58")
    a("v_mul_f32 v59, v48, v48")
    for i in range(1, 8):
        a(f"v_fmac_f32 v59, v{48+i}, v{48+i}")
    wave_sum(a, "v59", "v60")
    a(f"""v_mov_b32 v60, {f2u(1e-5):#x}
    v_fmac_f32 v60, {f2u(1.0/512):#x}, v59
    v_rsq_f32 v60, v60
    s_nop 0""")
    for i in range(8):
        a(f"v_mul_f32 v{48+i}, v{48+i}, v60")
    for i in range(4):
        a(f"v_cvt_pk_bf16_f32 v{60+i}, v{48+2*i}, v{49+2*i}")
    a("""ds_write_b64 v46, v[60:61]
    ds_write_b64 v46, v[62:63] offset:16""")
    a.wait_vm("wq", "ff", extra="lgkmcnt(0)")
    a("s_barrier")
    ts(a, 3)
    a("s_lshl_b32 s6, s54, 8\nv_add_u32 v58, s6, v45")
    for t in range(4):
        a(f"ds_read_b128 v[{200+4*t}:{203+4*t}], v58 offset:{64*t}")
        rb = "v44" if t < 2 else "v47"
        off = FF_OFF + 32768 * (t & 1)
        a(f"ds_read_b64_tr_b16 v[{216+4*t}:{217+4*t}], {rb} offset:{off}")
        a(f"ds_read_b64_tr_b16 v[{218+4*t}:{219+4*t}], {rb} offset:{off+2048}")

    def q_reads(t):
        a(f"ds_read_b128 v[{64+4*t}:{67+4*t}], v45 offset:{64*t}")
        rb = "v44" if t < 8 else "v47"
        off = WQ_OFF + 32768 * ((t >> 2) & 1) + 4096 * (t & 3)
        a(f"ds_read_b64_tr_b16 v[{128+4*t}:{129+4*t}], {rb} offset:{off}")
        a(f"ds_read_b64_tr_b16 v[{130+4*t}:{131+4*t}], {rb} offset:{off+2048}")
    q_reads(0)
    for t in range(4):
        a(f"s_waitcnt lgkmcnt({3*(3-t)+3})")
        c = "0" if t == 0 else "v[232:235]"
        a(f"v_mfma_f32_16x16x32_bf16 v[232:235], v[{216+4*t}:{219+4*t}], v[{200+4*t}:{203+4*t}], {c}")
    for t in range(1, 5):
        q_reads(t)
    for t in range(16):
        ahead = min(4, 15 - t)
        a(f"s_waitcnt lgkmcnt({3*ahead})")
        acc = 192 + 4 * (t & 1)
        c = "0" if t < 2 else f"v[{acc}:{acc+3}]"
        a(f"v_mfma_f32_16x16x32_bf16 v[{acc}:{acc+3}], v[{128+4*t}:{131+4*t}], v[{64+4*t}:{67+4*t}], {c}")
        if t + 5 < 16:
            q_reads(t + 5)
    a(f"""s_lshl_b32 s6, s54, 1
    s_add_u32 s6, s6, s56
    s_mul_i32 s6, s6, {4*7168}
    s_lshl_b32 s7, s55, 8
    s_add_u32 s6, s6, s7
    s_lshl_b32 s7, s5, 6
    s_add_u32 s6, s6, s7
    s_add_u32 s6, s6, {WS_GU}
    s_movk_i32 s7, 7168
    v_mul_lo_u32 v58, v4, s7
    v_lshl_add_u32 v58, v3, 4, v58
    v_lshlrev_b32 v59, 7, v4
    v_lshl_add_u32 v59, v3, 3, v59
    s_lshl_b32 s7, s5, 5
    s_add_u32 s7, s7, {L_Q}
    v_add_u32 v59, s7, v59
    v_cmp_gt_u32 vcc, 4, v4
    s_and_saveexec_b64 s[62:63], vcc""")
    a.vmop(f"buffer_store_dwordx4 v[232:235], v58, {R(sWS)}, s6 offen sc1", "gu")
    a(f"""s_nop 4
    v_add_f32 v192, v192, v196
    v_add_f32 v193, v193, v197
    v_add_f32 v194, v194, v198
    v_add_f32 v195, v195, v199
    v_cvt_pk_bf16_f32 v192, v192, v193
    v_cvt_pk_bf16_f32 v193, v194, v195
    ds_write_b64 v59, v[192:193]
    s_mov_b64 exec, s[62:63]
    v_lshlrev_b32 v59, 7, v6
    v_lshl_add_u32 v59, v3, 4, v59
    v_add_u32 v59, {L_Q}, v59
    s_waitcnt lgkmcnt(0)
    s_barrier""")
    ts(a, 4)
    a("""ds_read_b128 v[64:67], v59
    ds_read_b128 v[68:71], v59 offset:64""")
    a(f"""s_lshl_b32 s6, s52, 17
    s_lshr_b32 s7, s3, 4
    s_lshl_b32 s7, s7, 14
    s_add_u32 s6, s6, s7
    s_lshl_b32 s7, s53, 2
    s_add_u32 s7, s7, s5
    s_lshl_b32 s7, s7, 10
    s_add_u32 s6, s6, s7
    s_and_b32 s7, s3, 15
    s_lshl_b32 s7, s7, 4
    s_add_u32 s6, s6, s7
    s_add_u32 s6, s6, {WS_QL}
    v_lshlrev_b32 v58, 15, v4
    v_lshl_add_u32 v58, v3, 8, v58
    s_mov_b32 s7, {f2u(QSCALE):#x}""")
    a.wait_vm("wuk", extra="lgkmcnt(0)")
    for t in range(2):
        for q in range(2):
            b = 12 + 8 * q + 4 * t
            c = "0" if t == 0 else f"v[{72+4*q}:{75+4*q}]"
            a(f"v_mfma_f32_16x16x32_bf16 v[{72+4*q}:{75+4*q}], v[{b}:{b+3}], v[{64+4*t}:{67+4*t}], {c}")
    a("""v_cmp_gt_u32 vcc, 4, v4
    s_and_saveexec_b64 s[62:63], vcc
    s_nop 7""")
    for i in range(8):
        a(f"v_mul_f32 v{72+i}, s7, v{72+i}")
    for i in range(4):
        a(f"v_cvt_pk_bf16_f32 v{72+i}, v{72+2*i}, v{73+2*i}")
    a.vmop(f"buffer_store_dwordx4 v[72:75], v58, {R(sWS)}, s6 offen sc1", "ql")
    a("s_mov_b64 exec, s[62:63]")
    ts(a, 5)
    if PF == 'late':
        prefetch('a')
    a("s_waitcnt vmcnt(0)")
    ts(a, 6)
    if TS:
        a(f"""s_waitcnt lgkmcnt(0)
        s_cmp_lg_u32 s5, 0
        s_cbranch_scc1 A_END
        v_mov_b32 v250, 0""")
        for p in range(7):
            a(f"v_writelane_b32 v250, s{64+2*p}, {p}")
        a(f"""s_lshl_b32 s6, s2, 7
        s_add_u32 s6, s6, {WS_TS}
        v_lshlrev_b32 v251, 2, v1
        v_cmp_gt_u32 vcc, 7, v1
        s_and_saveexec_b64 s[62:63], vcc
        buffer_store_dword v250, v251, {R(sWS)}, s6 offen""")
    a.label("A_END")
    a("s_endpgm")


def part_b(a, env):
    g = env
    L_QL, L_P, L_Q, L_X, L_MX, L_LS, L_CL, L_CT, L_H1, L_DN, WQ_OFF, FF_OFF, L_UV, L_WO = [g[k] for k in 'L_QL L_P L_Q L_X L_MX L_LS L_CL L_CT L_H1 L_DN WQ_OFF FF_OFF L_UV L_WO'.split()]
    if MAP:
        a("""s_bfe_u32 s6, s2, 0x20003      ; k
        s_lshl_b32 s7, s6, 1
        s_add_u32 s7, s7, s2
        s_and_b32 s7, s7, 7
        s_lshl_b32 s6, s6, 3
        s_add_u32 s3, s6, s7           ; h = ((x+2k)&7) + 8k""")
    a(f"""s_lshr_b32 s6, s57, 5          ; b
    s_lshl_b32 s6, s6, 1
    s_add_u32 s6, s6, s58
    s_lshl_b32 s6, s6, 14
    s_lshl_b32 s7, s5, 12
    s_add_u32 s6, s6, s7
    s_add_u32 s6, s6, {WS_QL}
    s_add_u32 s7, s6, 131072""")
    for dh in range(2):
        for tt in range(4):
            b = 128 + 16 * dh + 4 * tt
            a.vmop(f"buffer_load_dwordx4 v[{b}:{b+3}], v31, {R(sWS)}, s{6+dh} offen offset:{1024*tt}", "qlr")
    a(f"""s_mul_i32 s6, s5, 7168
    s_lshl_b32 s7, s59, 8
    s_add_u32 s6, s6, s7
    s_add_u32 s6, s6, {WS_GU}
    v_lshlrev_b32 v58, 2, v1""")
    for km in range(8):
        a.vmop(f"buffer_load_dword v{160+km}, v58, {R(sWS)}, s6 offen", "gur")
        if km < 7:
            a(f"s_add_u32 s6, s6, {4*7168}")
    a("""v_lshrrev_b32 v7, 3, v1
    v_and_b32 v2, 7, v1
    v_lshlrev_b32 v28, 1, v3
    v_xor_b32 v2, v2, v28
    v_lshlrev_b32 v2, 4, v2
    v_lshl_add_u32 v30, v7, 10, v2""")
    a(f"""s_lshl_b32 s6, s59, 6
    s_lshl_b32 s7, s5, 4
    s_add_u32 s6, s6, s7
    s_lshl_b32 s6, s6, 10
    s_lshl_b32 s7, s60, 7
    s_add_u32 s6, s6, s7
    s_lshl_b32 s7, s5, 11
    s_add_u32 m0, s7, {L_DN}""")
    a.vmop(f"s_nop 0\nbuffer_load_dwordx4 v30, {R(sDN)}, s6 offen{nt('dn')} lds", "dn")
    a("s_add_u32 s6, s6, 8192\ns_add_u32 m0, m0, 1024")
    a.vmop(f"s_nop 0\nbuffer_load_dwordx4 v30, {R(sDN)}, s6 offen{nt('dn')} lds", "dn")
    for k in range(8):
        a(f"v_xor_b32 v{32+k}, {k << 5}, v31")
    a("""s_lshl_b32 s61, s57, 17
    s_lshl_b32 s7, s5, 15
    s_add_u32 s61, s61, s7
    s_mov_b32 m0, s7""")

    def ckv_dma(k0, k1):
        for i in range(k0, k1):
            if i % 4 == 0 or i == k0:
                if "c" in ROT:
                    a(f"s_lshl_b32 s7, s5, 15\ns_add_u32 m0, s7, {4096*(i//4)}\ns_lshl_b32 s6, s58, 14\ns_xor_b32 s6, s6, {4096*(i//4)}\ns_add_u32 s6, s6, s61")
                else:
                    a(f"s_lshl_b32 s7, s5, 15\ns_add_u32 m0, s7, {4096*(i//4)}\ns_add_u32 s6, s61, {4096*(i//4)}")
            a.vmop(f"buffer_load_dwordx4 v{200 + (i & 7)}, {R(sCKV)}, s6 offen offset:{1024*(i&3)}{nt('ckv')} lds", "ckv0" if i < 16 else "ckv1")
    ckv_dma(0, NC0)
    a(f"""v_lshl_add_u32 v2, v3, 2, v5   ; rowl
    v_and_b32 v7, 1, v6
    v_lshrrev_b32 v44, 1, v6
    v_lshlrev_b32 v7, 3, v7
    v_lshl_add_u32 v56, v44, 4, v7 ; cc
    v_and_b32 v7, 1, v3
    v_lshlrev_b32 v7, 1, v7
    v_lshrrev_b32 v44, 1, v5
    v_add_u32 v7, v7, v44
    v_lshlrev_b32 v7, 1, v7        ; f3
    s_lshl_b32 s6, s5, 1
    v_xor_b32 v7, s6, v7
    v_lshl_add_u32 v7, v7, 4, v56
    v_lshl_add_u32 v44, v2, 7, v7
    v_add_u32 v47, 0x10000, v44
    v_add_u32 v57, {L_DN}, v44
    v_lshlrev_b32 v45, 10, v6
    v_lshl_add_u32 v45, v3, 4, v45
    v_add_u32 v45, {L_X}, v45
    v_lshrrev_b32 v46, 2, v1
    v_lshlrev_b32 v46, 6, v46
    v_and_b32 v7, 1, v6
    v_lshl_add_u32 v46, v7, 5, v46
    v_lshrrev_b32 v7, 1, v6
    v_lshl_add_u32 v46, v7, 3, v46
    s_lshl_b32 s6, s5, 10
    s_add_u32 s6, s6, {L_X}
    v_add_u32 v46, s6, v46""")
    a("""v_and_b32 v7, 7, v4
    v_lshlrev_b32 v7, 1, v7
    s_lshl_b32 s6, s5, 5
    v_add_u32 v58, s6, v4
    v_lshlrev_b32 v58, 10, v58""")
    for tq in range(4):
        a(f"v_add_u32 v59, {4*tq}, v3\nv_xor_b32 v59, v59, v7\nv_lshl_add_u32 v{24+tq}, v59, 4, v58")
    a(f"v_add_u32 v28, {L_QL}, v31")
    a("""v_and_b32 v7, 1, v3
    v_lshl_add_u32 v7, v7, 2, v5
    v_lshlrev_b32 v7, 1, v7
    v_lshl_add_u32 v58, v2, 10, v56
    s_lshl_b32 s6, s5, 8
    v_add_u32 v58, s6, v58""")
    for n in range(8):
        a(f"v_xor_b32 v59, {2*n}, v7\nv_lshl_add_u32 v{32+n}, v59, 4, v58\nv_add_u32 v{8+n}, 0x10000, v{32+n}")
    a("""v_lshlrev_b32 v58, 1, v3
    v_xor_b32 v58, v58, v4
    v_lshlrev_b32 v58, 4, v58
    v_lshl_add_u32 v192, v3, 13, v58
    v_xor_b32 v193, 0x80, v192
    s_and_b32 s6, s4, 3
    s_lshl_b32 s6, s6, 7
    s_lshl_b32 s7, s5, 5
    s_add_u32 s6, s6, s7
    s_lshl_b32 s6, s6, 13
    s_lshl_b32 s7, s3, 8
    s_add_u32 s52, s6, s7
    v_lshrrev_b32 v58, 5, v1
    v_and_b32 v59, 31, v1""")
    for q in range(4):
        a(f"""v_add_u32 v60, {2*q}, v58
        v_lshlrev_b32 v60, 1, v60
        v_xor_b32 v60, v60, v59
        v_lshlrev_b32 v60, 4, v60
        v_lshl_add_u32 v{194+q}, v58, 10, v60""")
    a("""s_lshl_b32 s6, s3, 17
    s_lshl_b32 s7, s5, 15
    s_add_u32 s6, s6, s7
    s_lshr_b32 s7, s4, 2
    s_lshl_b32 s7, s7, 9
    s_add_u32 s53, s6, s7""")
    wstate = [0]
    a("""s_lshr_b32 s54, s4, 2
    s_lshl_b32 s54, s54, 17
    s_and_b32 s55, s4, 3
    s_lshl_b32 s55, s55, 13""")

    def wload(n):
        for _ in range(n):
            i = wstate[0]
            if i >= 24:
                return
            wstate[0] += 1
            if "w" in ROT:
                if i < 8:
                    a("s_add_u32 s6, s52, s54")
                    a.vmop(f"buffer_load_dwordx4 a[{4*i}:{4*i+3}], v{192+(i&1)}, {R(sWUV)}, s6 offen{nt('wuv')}", "wuv")
                    a(f"s_add_u32 s54, s54, {4*8192}\ns_and_b32 s54, s54, {8*4*8192-1}")
                else:
                    i -= 8
                    a("s_add_u32 s6, s53, s55")
                    a.vmop(f"buffer_load_dwordx4 a[{32+4*i}:{35+4*i}], v{194+(i&3)}, {R(sWO)}, s6 offen{nt('wo')}", "wo")
                    a("s_add_u32 s55, s55, 2048\ns_and_b32 s55, s55, 32767")
            elif i < 8:
                a.vmop(f"buffer_load_dwordx4 a[{4*i}:{4*i+3}], v{192+(i&1)}, {R(sWUV)}, s52 offen{nt('wuv')}", "wuv")
                a(f"s_add_u32 s52, s52, {4*8192}")
            else:
                i -= 8
                a.vmop(f"buffer_load_dwordx4 a[{32+4*i}:{35+4*i}], v{194+(i&3)}, {R(sWO)}, s53 offen{nt('wo')}", "wo")
                a("s_add_u32 s53, s53, 2048")
    a(f"""s_lshl_b32 s6, s5, 12
    v_add_u32 v58, s6, v28""")
    a.wait_vm("qlr")
    for tt in range(4):
        for k in range(4):
            x, y, o = 128 + 4 * tt + k, 144 + 4 * tt + k, 64 + 4 * tt + k
            a(f"""v_lshlrev_b32 v59, 16, v{x}
            v_lshlrev_b32 v60, 16, v{y}
            v_and_b32 v61, 0xffff0000, v{x}
            v_and_b32 v62, 0xffff0000, v{y}
            v_add_f32 v59, v59, v60
            v_add_f32 v61, v61, v62
            v_cvt_pk_bf16_f32 v{o}, v59, v61""")
        a(f"ds_write_b128 v58, v[{64+4*tt}:{67+4*tt}] offset:{1024*tt}")
    a("s_waitcnt lgkmcnt(0)\ns_barrier")
    ts(a, 8)
    ckv_dma(NC0, 32)
    for t in range(16):
        a(f"ds_read_b128 v[{64+4*t}:{67+4*t}], v28 offset:{1024*t}")
    a.wait_vm("gur")
    a(f"""v_add_f32 v160, v160, v162
    v_add_f32 v164, v164, v166
    v_add_f32 v161, v161, v163
    v_add_f32 v165, v165, v167
    v_add_f32 v160, v160, v164
    v_add_f32 v161, v161, v165
    v_mul_f32 v162, {f2u(-LOG2E):#x}, v160
    v_exp_f32 v162, v162
    v_and_b32 v163, 32, v1
    v_lshl_add_u32 v163, v5, 3, v163
    v_add_f32 v162, 1.0, v162
    v_rcp_f32 v162, v162
    v_bfe_u32 v164, v1, 4, 1
    v_lshl_add_u32 v163, v164, 2, v163
    v_add_u32 v163, v163, v6
    v_mul_f32 v160, v160, v162
    v_mul_f32 v160, v160, v161
    v_cvt_pk_bf16_f32 v160, v160, v160
    v_lshlrev_b32 v163, 1, v163
    s_lshl_b32 s6, s5, 7
    s_add_u32 s6, s6, {L_H1}
    v_add_u32 v163, s6, v163
    ds_write_b16 v163, v160""")
    for kb in range(2):
        a.wait_vm('ckv%d' % kb)
        if kb == 1:
            wload(W1)
        for t in range(16):
            a(f"ds_read_b128 v[{128+4*t}:{131+4*t}], v{24+(t&3)} offset:{(t>>2)*256+kb*16384}")
        for t in range(16):
            a(f"s_waitcnt lgkmcnt({15-t})")
            c = "0" if t == 0 else f"v[{48+4*kb}:{51+4*kb}]"
            a(f"v_mfma_f32_16x16x32_bf16 v[{48+4*kb}:{51+4*kb}], v[{128+4*t}:{131+4*t}], v[{64+4*t}:{67+4*t}], {c}")
    ts(a, 9)
    a(f"""v_lshlrev_b32 v58, 4, v4       ; head*16
    s_lshl_b32 s6, s5, 2
    s_add_u32 s6, s6, {L_MX}
    v_add_u32 v59, s6, v58         ; MX[head][w]
    v_add_u32 v58, {L_MX}, v58
    s_nop 4
    v_max3_f32 v60, v48, v49, v50
    v_max3_f32 v60, v60, v51, v52
    v_max3_f32 v60, v60, v53, v54
    v_max_f32 v60, v60, v55""")
    xg_reduce(a, "v60", "v61", "v_max_f32")
    a(f"""ds_write_b32 v59, v60
    s_waitcnt lgkmcnt(0)
    s_barrier
    ds_read_b128 v[128:131], v58
    s_waitcnt lgkmcnt(0)
    v_max3_f32 v60, v128, v129, v130
    v_max_f32 v60, v60, v131        ; m""")
    wload(W2)
    for i in range(8):
        a(f"v_sub_f32 v{48+i}, v{48+i}, v60")
    for i in range(8):
        a(f"v_exp_f32 v{48+i}, v{48+i}")
    a("""s_nop 0
    v_add_f32 v61, v48, v49
    v_add_f32 v62, v50, v51
    v_add_f32 v63, v52, v53
    v_add_f32 v128, v54, v55
    v_add_f32 v61, v61, v62
    v_add_f32 v63, v63, v128
    v_add_f32 v61, v61, v63""")
    for i in range(4):
        a(f"v_cvt_pk_bf16_f32 v{48+i}, v{48+2*i}, v{49+2*i}")
    a(f"""s_lshl_b32 s6, s5, 10
    s_add_u32 s6, s6, {L_P}
    v_add_u32 v62, s6, v31
    ds_write_b128 v62, v[48:51]""")
    xg_reduce(a, "v61", "v63", "v_add_f32")
    a(f"""ds_write_b32 v59, v61 offset:{L_LS-L_MX}
    v_add_u32 v62, {L_P}, v31
    s_waitcnt lgkmcnt(0)
    s_barrier""")
    for u in range(4):
        a(f"ds_read_b128 v[{64+4*u}:{67+4*u}], v62 offset:{1024*u}")
    a(f"ds_read_b128 v[52:55], v58 offset:{L_LS-L_MX}")
    ts(a, 10)

    def pv_reads(u):
        base = 128 + 32 * (u & 1)
        ab = 32 if u < 2 else 8
        off = (u & 1) * 32768
        for n in range(8):
            a(f"ds_read_b64_tr_b16 v[{base+4*n}:{base+4*n+1}], v{ab+n} offset:{off}")
            a(f"ds_read_b64_tr_b16 v[{base+4*n+2}:{base+4*n+3}], v{ab+n} offset:{off+16384}")
    pv_reads(0)
    for u in range(4):
        if u < 3:
            pv_reads(u + 1)
        wload(W3)
        base = 128 + 32 * (u & 1)
        for n in range(8):
            rem = (16 if u < 3 else 0) + 14 - 2 * n
            a(f"s_waitcnt lgkmcnt({min(rem, 15)})")
            c = "0" if u == 0 else f"v[{80+4*n}:{83+4*n}]"
            a(f"v_mfma_f32_16x16x32_bf16 v[{80+4*n}:{83+4*n}], v[{base+4*n}:{base+4*n+3}], v[{64+4*u}:{67+4*u}], {c}")
    wload(24)
    ts(a, 11)
    a("s_barrier")
    a(f"""v_add_f32 v52, v52, v53
    v_add_f32 v54, v54, v55
    v_add_f32 v61, v52, v54         ; L
    s_mov_b32 s61, 0xfffffffe
    s_lshr_b32 s7, s57, 5           ; b
    s_lshl_b32 s6, s58, 6
    s_add_u32 s6, s6, s7            ; (hg*16)*4 + b
    s_lshl_b32 s6, s6, 2
    s_and_b32 s7, s57, 3
    s_add_u32 s6, s6, s7
    s_lshl_b32 s6, s6, 3
    s_bfe_u32 s7, s57, 0x30002      ; (T>>2)&7 = s>>2
    s_add_u32 s6, s6, s7
    s_lshl_b32 s6, s6, 3
    s_add_u32 s6, s6, {WS_STATS}
    v_lshlrev_b32 v58, 10, v4       ; head * 1024
    v_min_u32 v60, s61, v60
    v_min_u32 v61, s61, v61""")
    a(f"""s_lshl_b32 s7, s58, 6
    s_add_u32 s7, s7, s5
    s_lshl_b32 s7, s7, 7
    s_add_u32 s7, s7, s57
    s_lshl_b32 s7, s7, 8
    s_add_u32 s7, s7, {WS_PART}
    v_lshlrev_b32 v59, 17, v4
    v_lshl_add_u32 v59, v3, 4, v59""")
    for np_ in range(4):
        b0 = 80 + 8 * np_
        a(f"""v_cvt_pk_bf16_f32 v{b0}, v{b0}, v{b0+1}
        v_cvt_pk_bf16_f32 v{b0+1}, v{b0+2}, v{b0+3}
        v_cvt_pk_bf16_f32 v{b0+2}, v{b0+4}, v{b0+5}
        v_cvt_pk_bf16_f32 v{b0+3}, v{b0+6}, v{b0+7}
        v_min_u32 v{b0}, s61, v{b0}
        v_min_u32 v{b0+1}, s61, v{b0+1}
        v_min_u32 v{b0+2}, s61, v{b0+2}
        v_min_u32 v{b0+3}, s61, v{b0+3}""")
        a.vmop(f"buffer_store_dwordx4 v[{b0}:{b0+3}], v59, {R(sWS)}, s7 offen offset:{64*np_} sc1", "part")
    a("""s_cmp_lg_u32 s5, 0
    s_cbranch_scc1 NOSTAT
    v_cmp_gt_u32 vcc, 16, v1
    s_and_saveexec_b64 s[62:63], vcc""")
    a(f"buffer_store_dwordx2 v[60:61], v58, {R(sWS)}, s6 offen sc1")
    a("s_mov_b64 exec, s[62:63]")
    a.label("NOSTAT")
    a(f"""s_lshl_b32 s6, s5, 13
    v_add_u32 v58, s6, v31
    s_lshl_b32 s6, s5, 14
    s_add_u32 s6, s6, {L_WO}
    v_add_u32 v59, s6, v31""")
    a.wait_vm("wuv", "wo")
    if "w" in ROT:
        a("""s_lshr_b32 s54, s4, 2
        s_lshl_b32 s54, s54, 12
        s_and_b32 s55, s4, 3
        s_lshl_b32 s55, s55, 12""")
        for i in range(8):
            if i % 4 == 0:
                a(f"s_xor_b32 s6, s54, {1024*i}\nv_add_u32 v60, s6, v58")
            a(f"ds_write_b128 v60, a[{4*i}:{4*i+3}] offset:{L_UV+1024*(i&3)}")
        for i in range(16):
            if i % 4 == 0:
                a(f"s_add_u32 s6, s55, {1024*i}\ns_and_b32 s6, s6, 16383\nv_add_u32 v60, s6, v59")
            a(f"ds_write_b128 v60, a[{32+4*i}:{35+4*i}] offset:{1024*(i&3)}")
    else:
        for i in range(8):
            a(f"ds_write_b128 v58, a[{4*i}:{4*i+3}] offset:{L_UV+1024*i}")
        for i in range(16):
            a(f"ds_write_b128 v59, a[{32+4*i}:{35+4*i}] offset:{1024*i}")
    a(f"""v_lshlrev_b32 v58, 7, v6
    v_lshl_add_u32 v58, v3, 4, v58
    v_add_u32 v58, {L_H1}, v58
    ds_read_b128 v[64:67], v58
    ds_read_b128 v[68:71], v58 offset:64""")
    for t in range(2):
        b = 72 + 4 * t
        a(f"ds_read_b64_tr_b16 v[{b}:{b+1}], v57 offset:{4096*t}")
        a(f"ds_read_b64_tr_b16 v[{b+2}:{b+3}], v57 offset:{4096*t+2048}")
    a(f"""s_lshl_b32 s6, s60, 1
    s_lshr_b32 s7, s5, 1
    s_add_u32 s6, s6, s7
    s_mul_i32 s6, s6, {SP_ROWS*128}
    s_add_u32 s7, s59, 128
    s_lshl_b32 s7, s7, 7
    s_add_u32 s6, s6, s7
    s_and_b32 s7, s5, 1
    s_lshl_b32 s7, s7, 6
    s_add_u32 s6, s6, s7
    s_add_u32 s6, s6, {WS_SP}
    s_mov_b32 s7, {16*SP_ROWS*128}
    v_mul_lo_u32 v63, v4, s7
    v_lshl_add_u32 v63, v3, 4, v63
    s_waitcnt lgkmcnt(0)
    v_mfma_f32_16x16x32_bf16 v[80:83], v[72:75], v[64:67], 0
    v_mfma_f32_16x16x32_bf16 v[80:83], v[76:79], v[68:71], v[80:83]
    v_cmp_gt_u32 vcc, 4, v4
    s_and_saveexec_b64 s[62:63], vcc
    s_nop 7
    v_min_u32 v80, s61, v80
    v_min_u32 v81, s61, v81
    v_min_u32 v82, s61, v82
    v_min_u32 v83, s61, v83
    buffer_store_dwordx4 v[80:83], v63, {R(sWS)}, s6 offen sc1
    s_mov_b64 exec, s[62:63]""")
    ts(a, 12)
    for q in range(2):
        a(f"""s_lshl_b32 s6, s5, 2
        s_add_u32 s6, s6, {2*q}
        v_xor_b32 v58, s6, v7
        v_lshl_add_u32 v58, v58, 4, v56
        v_lshl_add_u32 v{24+q}, v2, 8, v58""")
    for q in range(4):
        a(f"""s_lshl_b32 s6, s5, 3
        s_add_u32 s6, s6, {2*q}
        s_and_b32 s7, s6, 15
        s_and_b32 s6, s6, 16
        v_xor_b32 v58, s7, v7
        v_add_u32 v58, s6, v58
        v_lshl_add_u32 v58, v58, 4, v56
        v_lshl_add_u32 v58, v2, 9, v58
        v_add_u32 v{26+q}, {L_WO}, v58""")
    a(f"""v_lshlrev_b32 v30, 8, v6
    v_lshl_add_u32 v30, v3, 4, v30
    v_add_u32 v30, {L_CL}, v30""")
    a(f"""s_lshl_b32 s6, s3, 2
    s_add_u32 s6, s6, s5
    s_lshl_b32 s6, s6, 8
    s_add_u32 s6, s6, {WS_STATS}
    v_lshlrev_b32 v58, 6, v3
    s_mov_b32 s7, {SPIN_MAX}""")
    a.label("E2S_POLL")
    for i in range(4):
        a(f"buffer_load_dwordx4 v[{64+4*i}:{67+4*i}], v58, {R(sWS)}, s6 offen offset:{16*i} sc1")
    a("""s_waitcnt vmcnt(0)
    v_max3_u32 v59, v64, v65, v66""")
    for i in range(6):
        a(f"v_max3_u32 v59, v59, v{67+2*i}, v{68+2*i}")
    a("""v_max_u32 v59, v59, v79
    v_cmp_eq_u32 vcc, -1, v59
    s_cbranch_vccz E2S_DONE
    s_sub_u32 s7, s7, 1
    s_cmp_eq_u32 s7, 0
    s_cbranch_scc1 E2S_DONE
    s_sleep 1
    s_branch E2S_POLL""")
    a.label("E2S_DONE")
    a(f"""s_lshl_b32 s6, s3, 2
    s_and_b32 s7, s4, 3
    s_add_u32 s6, s6, s7
    s_lshl_b32 s6, s6, 2
    s_add_u32 s6, s6, s5
    s_lshl_b32 s6, s6, 13
    s_add_u32 s6, s6, {WS_PART}
    s_add_u32 s61, s6, 4096
    s_mov_b32 s7, {SPIN_MAX}""")
    a.label("E2P_POLL")
    for i in range(8):
        a(f"buffer_load_dwordx4 v[{80+4*i}:{83+4*i}], v31, {R(sWS)}, s{6 if i < 4 else 61} offen offset:{1024*(i&3)} sc1")
    ts(a, 13)
    a("""v_max3_f32 v59, v64, v66, v68
    v_max3_f32 v59, v59, v70, v72
    v_max3_f32 v59, v59, v74, v76
    v_max_f32 v59, v59, v78""")
    xg_reduce(a, "v59", "v60", "v_max_f32")
    for i in range(8):
        a(f"v_sub_f32 v{112+i}, v{64+2*i}, v59")
    for i in range(8):
        a(f"v_exp_f32 v{112+i}, v{112+i}")
    a("s_nop 0\nv_mul_f32 v60, v112, v65")
    for i in range(1, 8):
        a(f"v_fmac_f32 v60, v{112+i}, v{65+2*i}")
    xg_reduce(a, "v60", "v61", "v_add_f32")
    a("v_rcp_f32 v60, v60\ns_nop 0")
    for i in range(8):
        a(f"v_mul_f32 v{112+i}, v{112+i}, v60")
    a("""s_waitcnt vmcnt(0)
    v_max3_u32 v59, v80, v81, v82""")
    for i in range(14):
        a(f"v_max3_u32 v59, v59, v{83+2*i}, v{84+2*i}")
    a("""v_max_u32 v59, v59, v111
    v_cmp_eq_u32 vcc, -1, v59
    s_cbranch_vccz E2P_DONE
    s_sub_u32 s7, s7, 1
    s_cmp_eq_u32 s7, 0
    s_cbranch_scc1 E2P_DONE
    s_branch E2P_POLL""")
    a.label("E2P_DONE")
    ts(a, 14)
    for i in range(8):
        for k in range(4):
            src = 80 + 4 * i + k
            a(f"v_lshlrev_b32 v59, 16, v{src}\nv_and_b32 v60, 0xffff0000, v{src}")
            if i == 0:
                a(f"v_mul_f32 v{120+2*k}, v112, v59\nv_mul_f32 v{121+2*k}, v112, v60")
            else:
                a(f"v_fmac_f32 v{120+2*k}, v{112+i}, v59\nv_fmac_f32 v{121+2*k}, v{112+i}, v60")
    for k in range(8):
        xg_reduce(a, f"v{120+k}", "v59", "v_add_f32")
    for k in range(4):
        a(f"v_cvt_pk_bf16_f32 v{120+k}, v{120+2*k}, v{121+2*k}")
    a(f"""s_lshl_b32 s6, s5, 8
    s_add_u32 s6, s6, {L_CL}
    v_lshlrev_b32 v59, 4, v4
    v_add_u32 v59, s6, v59
    ds_write_b128 v59, v[120:123]
    s_waitcnt lgkmcnt(0)
    s_barrier""")
    for t in range(4):
        a(f"ds_read_b128 v[{64+4*t}:{67+4*t}], v30 offset:{64*t}")
    for t in range(4):
        for q in range(2):
            b = 128 + 8 * t + 4 * q
            a(f"ds_read_b64_tr_b16 v[{b}:{b+1}], v{24+q} offset:{L_UV+8192*t}")
            a(f"ds_read_b64_tr_b16 v[{b+2}:{b+3}], v{24+q} offset:{L_UV+8192*t+4096}")
    for t in range(4):
        for q in range(2):
            b = 128 + 8 * t + 4 * q
            a(f"s_waitcnt lgkmcnt({14 - 4*t - 2*q})")
            c = "0" if t == 0 else f"v[{80+4*q}:{83+4*q}]"
            a(f"v_mfma_f32_16x16x32_bf16 v[{80+4*q}:{83+4*q}], v[{b}:{b+3}], v[{64+4*t}:{67+4*t}], {c}")
    for t in range(4):
        for q in range(4):
            b = 128 + 16 * t + 4 * q
            if t < 2:
                continue
            a(f"ds_read_b64_tr_b16 v[{b}:{b+1}], v{26+q} offset:{16384*t}")
            a(f"ds_read_b64_tr_b16 v[{b+2}:{b+3}], v{26+q} offset:{16384*t+8192}")
    a(f"""v_lshlrev_b32 v59, 8, v4
    v_lshl_add_u32 v59, v3, 4, v59
    s_lshl_b32 s6, s5, 6
    s_add_u32 s6, s6, {L_CT}
    v_add_u32 v59, s6, v59
    v_cmp_gt_u32 vcc, 4, v4
    s_nop 2
    v_cvt_pk_bf16_f32 v80, v80, v81
    v_cvt_pk_bf16_f32 v81, v82, v83
    v_cvt_pk_bf16_f32 v82, v84, v85
    v_cvt_pk_bf16_f32 v83, v86, v87
    s_and_saveexec_b64 s[62:63], vcc
    ds_write_b128 v59, v[80:83]
    s_mov_b64 exec, s[62:63]""")
    for t in range(2):
        for q in range(4):
            b = 128 + 16 * t + 4 * q
            a(f"ds_read_b64_tr_b16 v[{b}:{b+1}], v{26+q} offset:{16384*t}")
            a(f"ds_read_b64_tr_b16 v[{b+2}:{b+3}], v{26+q} offset:{16384*t+8192}")
    a("s_waitcnt lgkmcnt(0)\ns_barrier")
    a(f"v_add_u32 v30, {L_CT-L_CL}, v30")
    for t in range(4):
        a(f"ds_read_b128 v[{64+4*t}:{67+4*t}], v30 offset:{64*t}")
    for t in range(4):
        a(f"s_waitcnt lgkmcnt({3-t})")
        for q in range(4):
            b = 128 + 16 * t + 4 * q
            c = "0" if t == 0 else f"v[{80+4*q}:{83+4*q}]"
            a(f"v_mfma_f32_16x16x32_bf16 v[{80+4*q}:{83+4*q}], v[{b}:{b+3}], v[{64+4*t}:{67+4*t}], {c}")
    a(f"""s_lshr_b32 s6, s4, 2
    s_lshl_b32 s6, s6, 3
    s_lshl_b32 s7, s5, 1
    s_add_u32 s6, s6, s7
    s_mul_i32 s6, s6, {SP_ROWS*128}
    s_lshl_b32 s7, s3, 2
    s_and_b32 s61, s4, 3
    s_add_u32 s7, s7, s61
    s_lshl_b32 s7, s7, 7
    s_add_u32 s6, s6, s7
    s_add_u32 s6, s6, {WS_SP}
    s_add_u32 s7, s6, {SP_ROWS*128}
    s_mov_b32 s61, 0xfffffffe
    v_cmp_gt_u32 vcc, 4, v4
    s_and_saveexec_b64 s[62:63], vcc
    s_nop 2""")
    for i in range(16):
        a(f"v_min_u32 v{80+i}, s61, v{80+i}")
    a(f"""buffer_store_dwordx4 v[80:83], v63, {R(sWS)}, s6 offen sc1
    buffer_store_dwordx4 v[84:87], v63, {R(sWS)}, s6 offen offset:64 sc1
    buffer_store_dwordx4 v[88:91], v63, {R(sWS)}, s7 offen sc1
    buffer_store_dwordx4 v[92:95], v63, {R(sWS)}, s7 offen offset:64 sc1
    s_mov_b64 exec, s[62:63]""")
    ts(a, 15)
    a(f"""s_cmp_ge_u32 s2, 64
    s_cbranch_scc1 B_FIN
    v_lshrrev_b32 v2, 3, v0
    v_and_b32 v7, 7, v0            ; chunk
    s_mul_i32 s6, s2, {SP_ROWS*128}
    s_add_u32 s6, s6, {WS_SP}
    v_lshlrev_b32 v58, 4, v0       ; tid*16
    s_lshl_b32 s7, s2, 6
    v_lshlrev_b32 v59, 1, v0
    buffer_load_ushort v28, v59, {R(sX)}, s7 offen
    v_mov_b32 v24, 0
    v_mov_b32 v25, 0
    v_mov_b32 v26, 0
    v_mov_b32 v27, 0
    s_add_u32 s52, s6, 4096
    s_add_u32 s53, s6, 8192
    s_add_u32 s54, s6, 12288
    s_add_u32 s55, s6, 16384
    v_cmp_gt_u32 s[56:57], 28, v2
    s_mov_b32 s58, {SPIN_MAX}""")
    a.label("E3_POLL")
    a(f"""buffer_load_dwordx4 v[8:11], v58, {R(sWS)}, s6 offen sc1
    buffer_load_dwordx4 v[12:15], v58, {R(sWS)}, s52 offen sc1
    buffer_load_dwordx4 v[16:19], v58, {R(sWS)}, s53 offen sc1
    buffer_load_dwordx4 v[20:23], v58, {R(sWS)}, s54 offen sc1
    s_mov_b64 exec, s[56:57]
    buffer_load_dwordx4 v[24:27], v58, {R(sWS)}, s55 offen sc1
    s_mov_b64 exec, -1
    s_waitcnt vmcnt(0)
    v_max3_u32 v29, v8, v9, v10""")
    for i in range(8):
        a(f"v_max3_u32 v29, v29, v{11+2*i}, v{12+2*i}")
    a("""v_max_u32 v29, v29, v27
    v_cmp_eq_u32 vcc, -1, v29
    s_cbranch_vccz E3_DONE
    s_sub_u32 s58, s58, 1
    s_cmp_eq_u32 s58, 0
    s_cbranch_scc1 E3_DONE
    s_branch E3_POLL""")
    a.label("E3_DONE")
    ts(a, 16)
    for i in range(4):
        a(f"v_add_f32 v{8+i}, v{8+i}, v{12+i}\nv_add_f32 v{16+i}, v{16+i}, v{20+i}\nv_add_f32 v{8+i}, v{8+i}, v{16+i}")
    for r in list(range(8, 12)) + list(range(24, 28)):
        a(f"s_nop 1\nv_add_f32_dpp v{r}, v{r}, v{r} row_ror:8 row_mask:0xf bank_mask:0xf")
        xg_reduce(a, f"v{r}", "v29", "v_add_f32")
    L_R = L_QL
    a(f"""s_lshl_b32 s6, s5, 8
    s_add_u32 s6, s6, {L_R}
    v_lshlrev_b32 v30, 4, v7
    v_add_u32 v30, s6, v30
    v_cmp_gt_u32 vcc, 8, v1
    s_and_saveexec_b64 s[62:63], vcc
    ds_write_b128 v30, v[8:11]
    ds_write_b128 v30, v[24:27] offset:128
    s_mov_b64 exec, s[62:63]
    s_waitcnt lgkmcnt(0)
    s_barrier
    v_cmp_gt_u32 vcc, 32, v0
    s_and_saveexec_b64 s[62:63], vcc
    s_cbranch_execz B_FIN
    v_lshlrev_b32 v30, 2, v0
    v_add_u32 v30, {L_R}, v30""")
    for w in range(4):
        a(f"ds_read_b32 v{8+w}, v30 offset:{256*w}\nds_read_b32 v{12+w}, v30 offset:{256*w+128}")
    a(f"""s_waitcnt lgkmcnt(0)
    v_add_f32 v8, v8, v9
    v_add_f32 v10, v10, v11
    v_add_f32 v8, v8, v10           ; s
    v_add_f32 v12, v12, v13
    v_add_f32 v14, v14, v15
    v_add_f32 v12, v12, v14         ; ffn
    v_mul_f32 v13, {f2u(-LOG2E):#x}, v12
    v_exp_f32 v13, v13
    s_nop 0
    v_add_f32 v13, 1.0, v13
    v_rcp_f32 v13, v13
    s_nop 0
    v_mul_f32 v12, v12, v13         ; silu(ffn)
    v_lshlrev_b32 v28, 16, v28
    v_fmac_f32 v28, v8, v12
    v_cvt_pk_bf16_f32 v28, v28, v28
    buffer_store_short v28, v59, {R(sOUT)}, s7 offen""")
    a.label("B_FIN")
    if TS:
        a("s_mov_b64 exec, -1\ns_waitcnt vmcnt(0)")
        ts(a, 17)
        a(f"""s_waitcnt lgkmcnt(0)
        s_cmp_lg_u32 s5, 0
        s_cbranch_scc1 B_END
        v_mov_b32 v250, 0""")
        for p in range(7, 18):
            a(f"v_writelane_b32 v250, s{64+2*p}, {p}")
        a(f"""s_lshl_b32 s6, s2, 7
        s_add_u32 s6, s6, {WS_TS}
        v_lshlrev_b32 v251, 2, v1
        v_subrev_u32 v252, 7, v1
        v_cmp_gt_u32 vcc, 11, v252
        s_and_saveexec_b64 s[62:63], vcc
        buffer_store_dword v250, v251, {R(sWS)}, s6 offen""")
    a.label("B_END")
    a("s_endpgm")


def main():
    ref = open(f"cdna_kernels/{NAME}.s.ref").read()
    head = []
    for line in ref.split("\n"):
        if line.startswith("; @launch") or line.startswith("; Override") or line.startswith("; grid="):
            continue
        if line.startswith(";"):
            head.append(line)
        else:
            break
    ks = [kern("A"), kern("B")]
    out = "\n".join(head) + "\n"
    for txt, name, grid, lds in ks:
        out += f"; @launch kernel={name} grid=({grid},1,1) block=(256,1,1) lds={lds}\n"
    out += '.amdgcn_target "amdgcn-amd-amdhsa--gfx950"\n.text\n'
    for txt, name, grid, lds in ks:
        out += txt
    out += '.section .rodata,"a"\n'
    for txt, name, grid, lds in ks:
        out += f""".p2align 6
.amdhsa_kernel {name}
  .amdhsa_next_free_vgpr 512
  .amdhsa_next_free_sgpr 102
  .amdhsa_accum_offset 256
  .amdhsa_group_segment_fixed_size 0
  .amdhsa_kernarg_size 104
  .amdhsa_user_sgpr_count 2
  .amdhsa_user_sgpr_kernarg_segment_ptr 1
  .amdhsa_system_sgpr_workgroup_id_x 1
.end_amdhsa_kernel
"""
    dst = sys.argv[1] if len(sys.argv) > 1 else f"cdna_kernels/{NAME}.s"
    open(dst, "w").write(out)
    print("wrote", dst, len(out))


if __name__ == "__main__":
    main()
```

```python
import sys
import os
import struct

NAME = "recurrent_scan__compressed_kv_cla__swiglu_ffn__decode"

WS_QL = 0x000000
WS_GU = 0x040000
WS_STATS = 0x090000
WS_SP = 0x100000
WS_PART = 0x400000
WS_TS = 0x8000000
WS_BYTES = 0x10000000
SP_ROWS = 156

QSCALE = (128 ** -0.5) * 1.4426950408889634
LOG2E = 1.4426950408889634
DIAG = bool(os.environ.get("DIAG"))
TS = bool(os.environ.get("TS")) or DIAG
SPIN_MAX = 40000
NT = set(os.environ.get("NT", "").split(","))


def nt(tag):
    return " nt" if tag in NT or "all" in NT else ""


PF = os.environ.get("PF", "")
PFN = int(os.environ.get("PFN", "16"))
PFW = int(os.environ.get("PFW", "0"))
P2A = 8
ROT = os.environ.get("ROT", "")
NC0 = int(os.environ.get("NC0", "16"))
W1 = int(os.environ.get("W1", "6"))
W2 = int(os.environ.get("W2", "4"))
W3 = int(os.environ.get("W3", "0"))
SKIP = int(os.environ.get("SKIP", "1"))
WPOST = int(os.environ.get("WPOST", "1"))
CPOLL = int(os.environ.get("CPOLL", "1"))
PRE = int(os.environ.get("PRE", "1"))
PREX = int(os.environ.get("PREX", "1"))
LNE = int(os.environ.get("LNE", "8"))
MAP = int(os.environ.get("MAP", "1"))


def f2u(x):
    return struct.unpack("<I", struct.pack("<f", x))[0]


class A:
    def __init__(self):
        self.l = []
        self.vm = []

    def __call__(self, s):
        for line in s.strip("\n").split("\n"):
            line = line.strip()
            if line:
                self.l.append("    " + line)

    def label(self, s):
        self.l.append(s + ":")

    def raw(self, s):
        self.l.append(s)

    def text(self):
        return "\n".join(self.l) + "\n"

    def vmop(self, s, tag):
        self(s)
        self.vm.append(tag)

    def wait_vm(self, *tags, extra=""):
        last = max(i for i, t in enumerate(self.vm) if t in tags)
        n = len(self.vm) - 1 - last
        assert n <= 63, n
        self(f"s_waitcnt vmcnt({n}) {extra}")


def srd(a, d, lo, nbytes):
    a(f"""s_mov_b32 s{d}, s{lo}
    s_mov_b32 s{d+1}, s{lo+1}
    s_mov_b32 s{d+2}, {nbytes}
    s_mov_b32 s{d+3}, 0x00020000""")


def ts(a, p):
    if TS:
        a(f"s_memrealtime s[{64+2*p}:{65+2*p}]")


def xg_reduce(a, v, t, op):
    a(f"""v_mov_b32 {t}, {v}
    s_nop 1
    v_permlane16_swap_b32 {v}, {t}
    s_nop 1
    {op} {v}, {v}, {t}
    v_mov_b32 {t}, {v}
    s_nop 1
    v_permlane32_swap_b32 {v}, {t}
    s_nop 1
    {op} {v}, {v}, {t}""")


def wave_sum(a, v, t):
    for r in (8, 4, 2, 1):
        a(f"s_nop 1\nv_add_f32_dpp {v}, {v}, {v} row_ror:{r} row_mask:0xf bank_mask:0xf")
    xg_reduce(a, v, t, "v_add_f32")


sX, sCKV, sWQ, sWUK, sWUV, sWO, sFF, sWS, sDN, sOUT, sDBG = 8, 12, 16, 20, 24, 28, 32, 36, 40, 44, 48


def R(d):
    return f"s[{d}:{d+3}]"


def kern(part):
    a = A()
    name = "k" + part.lower() + "_kernel"
    a.raw(f".globl {name}")
    a.raw(".p2align 8")
    a.raw(f".type {name},@function")
    a.label(name)
    L_QL = 131072
    L_P = L_QL + 16384
    L_Q = L_P
    L_X = L_P + 4096
    L_MX, L_LS, L_CL, L_CT, L_H1 = L_X, L_X + 256, L_X + 1024, L_X + 2048, L_X + 3072
    L_DN = L_X + 4096
    lds = L_DN + 8192
    WQ_OFF, FF_OFF = 12288, 28672
    L_UV, L_WO = 0, 32768
    if TS:
        a("s_getpc_b64 s[100:101]")
    JOB = "s_min_u32 s6, s2, 223"
    if part == 'A' and SKIP and MAP:
        JOB = """s_and_b32 s61, s2, 31
    s_cmp_gt_u32 s4, 1
    s_cselect_b32 s54, 1, 0
    s_cmp_gt_u32 s4, 5
    s_cselect_b32 s55, 1, 0
    s_sub_u32 s56, s4, s54
    s_sub_u32 s56, s56, s55
    s_lshl_b32 s56, s56, 5
    s_add_u32 s56, s56, s61
    s_lshr_b32 s55, s4, 2
    s_lshl_b32 s55, s55, 4
    s_bfe_u32 s54, s2, 0x20003
    s_lshl_b32 s54, s54, 2
    s_add_u32 s55, s55, s54
    s_and_b32 s54, s2, 3
    s_add_u32 s55, s55, s54
    s_add_u32 s55, s55, 192        ; job of p in {1,5}, x >= 4
    s_and_b32 s54, s4, 3
    s_cmp_eq_u32 s54, 1
    s_cselect_b32 s6, s55, s56
    s_cselect_b32 s61, 0, 4
    s_and_b32 s54, s2, 4
    s_or_b32 s61, s61, s54"""
    a(f"""s_load_dwordx16 s[64:79], s[0:1], 0
    s_load_dwordx8 s[80:87], s[0:1], 64
    s_load_dwordx2 s[88:89], s[0:1], 96
    s_cmp_ge_u32 s2, 256
    s_cbranch_scc1 {part}_END
    v_and_b32 v1, 63, v0
    v_lshrrev_b32 v2, 6, v0
    s_and_b32 s3, s2, 7
    v_readfirstlane_b32 s5, v2
    s_lshr_b32 s6, s2, 3
    s_and_b32 s7, s6, 3
    s_lshl_b32 s7, s7, 3
    s_or_b32 s3, s3, s7            ; h
    s_lshr_b32 s4, s2, 5           ; j
    s_and_b32 s52, s4, 1           ; dh
    s_lshr_b32 s53, s4, 1          ; cs
    {JOB}
    s_and_b32 s54, s6, 3           ; ks
    s_lshr_b32 s7, s6, 2           ; cb 0..55
    s_cmp_ge_u32 s7, 28
    s_cselect_b32 s56, 1, 0        ; mat
    s_mul_i32 s55, s56, 28
    s_sub_u32 s55, s7, s55         ; cbk
    s_lshr_b32 s59, s6, 3          ; fs 0..27
    s_and_b32 s60, s6, 7           ; ms 0..7
    s_lshr_b32 s6, s2, 3
    s_and_b32 s58, s6, 1           ; hg
    s_lshr_b32 s6, s2, 4
    s_lshl_b32 s6, s6, 3
    s_and_b32 s57, s2, 7
    s_or_b32 s57, s57, s6          ; T 0..127
    v_lshrrev_b32 v3, 4, v1        ; g
    v_and_b32 v4, 15, v1           ; i16
    v_bfe_u32 v5, v1, 2, 2         ; r
    v_and_b32 v6, 3, v1            ; c'
    v_lshlrev_b32 v31, 4, v1       ; l*16
    s_waitcnt lgkmcnt(0)""")
    srd(a, sX, 64, 4096)
    srd(a, sWQ, 68, 4194304)
    a("""s_cmp_eq_u32 s56, 1
    s_cselect_b32 s78, s80, s78
    s_cselect_b32 s79, s81, s79""")
    srd(a, sFF, 78, 1835008)
    srd(a, sWUK, 70, 4194304)
    srd(a, sWS, 88, WS_BYTES)
    srd(a, sDN, 82, 1835008)
    srd(a, sCKV, 66, 16777216)
    srd(a, sWUV, 72, 4194304)
    srd(a, sWO, 74, 4194304)
    srd(a, sOUT, 84, 4096)
    srd(a, sDBG, 86, 256)
    if part == 'A' and SKIP and MAP:
        a(f"""s_mov_b32 s40, s88
        s_mov_b32 s41, s89
        s_cmp_eq_u32 s61, 0
        s_cselect_b32 s34, 0, 1835008
        s_cselect_b32 s42, 0, {WS_BYTES}""")
    ts(a, 0 if part == 'A' else 7)
    if part == 'A':
        part_a(a, locals())
    else:
        part_b(a, locals())
    return a.text(), name, 256, lds


def part_a(a, env):
    g = env
    L_QL, L_P, L_Q, L_X, L_MX, L_LS, L_CL, L_CT, L_H1, L_DN, WQ_OFF, FF_OFF, L_UV, L_WO = [g[k] for k in 'L_QL L_P L_Q L_X L_MX L_LS L_CL L_CT L_H1 L_DN WQ_OFF FF_OFF L_UV L_WO'.split()]

    def prefetch(dst):
        a(f"""s_lshl_b32 s6, s57, 17
        s_lshl_b32 s7, s58, 16
        s_add_u32 s6, s6, s7
        s_mul_i32 s7, s5, {PFN*1024}
        s_add_u32 s6, s6, s7""")
        for i in range(PFN):
            if i and i % 4 == 0:
                a("s_add_u32 s6, s6, 4096")
            a.vmop(f"buffer_load_dwordx4 {dst}[{4*(i%16)}:{4*(i%16)+3}], v31, {R(sCKV)}, s6 offen offset:{1024*(i&3)}", "pf")
        if PFW:
            for sr in (sWUV, sWO):
                a("s_lshl_b32 s6, s2, 14\ns_lshl_b32 s7, s5, 12\ns_add_u32 s6, s6, s7")
                for i in range(4):
                    a.vmop(f"buffer_load_dwordx4 {dst}[{4*i}:{4*i+3}], v31, {R(sr)}, s6 offen offset:{1024*i}", "pf")
    if MAP:
        a("""s_mov_b32 s59, s3
        s_mov_b32 s60, s4
        s_and_b32 s6, s2, 7            ; x
        s_lshr_b32 s7, s2, 5           ; p
        s_bfe_u32 s53, s2, 0x20003
        s_add_u32 s3, s6, s7
        s_and_b32 s3, s3, 3
        s_lshl_b32 s3, s3, 3
        s_add_u32 s3, s3, s7           ; h = p + 8*((x+p)&3)
        s_lshr_b32 s6, s6, 2
        s_xor_b32 s6, s6, s7
        s_and_b32 s52, s6, 1           ; dh""")
    else:
        a("s_mov_b32 s59, s3\ns_mov_b32 s60, s4")
    def addr_ln():
        a(f"""v_lshl_add_u32 v2, v3, 2, v5   ; rowl
        v_and_b32 v7, 1, v6
        v_lshrrev_b32 v44, 1, v6
        v_lshlrev_b32 v7, 3, v7
        v_lshl_add_u32 v56, v44, 4, v7 ; cc
        v_and_b32 v7, 1, v3
        v_lshlrev_b32 v7, 1, v7
        v_lshrrev_b32 v44, 1, v5
        v_add_u32 v7, v7, v44
        v_lshlrev_b32 v7, 1, v7        ; f3
        s_lshl_b32 s6, s5, 1
        v_xor_b32 v7, s6, v7
        v_lshl_add_u32 v7, v7, 4, v56
        v_lshl_add_u32 v44, v2, 7, v7
        v_add_u32 v47, 0x10000, v44
        v_add_u32 v57, {L_DN}, v44
        v_lshlrev_b32 v45, 10, v6
        v_lshl_add_u32 v45, v3, 4, v45
        v_add_u32 v45, {L_X}, v45
        v_lshrrev_b32 v46, 2, v1
        v_lshlrev_b32 v46, 6, v46
        v_and_b32 v7, 1, v6
        v_lshl_add_u32 v46, v7, 5, v46
        v_lshrrev_b32 v7, 1, v6
        v_lshl_add_u32 v46, v7, 3, v46
        s_lshl_b32 s6, s5, 10
        s_add_u32 s6, s6, {L_X}
        v_add_u32 v46, s6, v46""")
        a.wait_vm("x")
        ts(a, 2)
        for i in range(4):
            a(f"v_lshlrev_b32 v{48+2*i}, 16, v{8+i}\nv_and_b32 v{49+2*i}, 0xffff0000, v{8+i}")
        a("""v_add_f32 v58, v48, v49
        v_add_f32 v59, v50, v51
        v_add_f32 v60, v52, v53
        v_add_f32 v61, v54, v55
        v_add_f32 v58, v58, v59
        v_add_f32 v60, v60, v61
        v_add_f32 v58, v58, v60""")
        wave_sum(a, "v58", "v59")
        a(f"v_mul_f32 v58, {f2u(1.0/512):#x}, v58")
        for i in range(8):
            a(f"v_sub_f32 v{48+i}, v{48+i}, v58")
        a("v_mul_f32 v59, v48, v48")
        for i in range(1, 8):
            a(f"v_fmac_f32 v59, v{48+i}, v{48+i}")
        wave_sum(a, "v59", "v60")
        a(f"""v_mov_b32 v60, {f2u(1e-5):#x}
        v_fmac_f32 v60, {f2u(1.0/512):#x}, v59
        v_rsq_f32 v60, v60
        s_nop 0""")
        for i in range(8):
            a(f"v_mul_f32 v{48+i}, v{48+i}, v60")
        for i in range(4):
            a(f"v_cvt_pk_bf16_f32 v{60+i}, v{48+2*i}, v{49+2*i}")
        a("""ds_write_b64 v46, v[60:61]
        ds_write_b64 v46, v[62:63] offset:16""")

    a("s_lshl_b32 s6, s5, 10")
    a.vmop(f"buffer_load_dwordx4 v[8:11], v31, {R(sX)}, s6 offen", "x")
    a(f"""v_lshrrev_b32 v7, 3, v1        ; l>>3
    v_and_b32 v2, 7, v1
    v_lshlrev_b32 v28, 1, v3
    v_xor_b32 v2, v2, v28
    v_lshlrev_b32 v2, 4, v2
    v_lshl_add_u32 v29, v7, 13, v2 ; w_q voff
    s_movk_i32 s6, 3584
    v_mul_lo_u32 v28, v7, s6
    v_add_u32 v28, v28, v2
    v_lshl_add_u32 v30, v7, 10, v2
    s_lshl_b32 s6, s5, 20
    s_lshl_b32 s7, s3, 8
    s_add_u32 s6, s6, s7
    s_lshl_b32 s7, s52, 7
    s_add_u32 s6, s6, s7
    s_lshl_b32 s7, s5, 15
    s_add_u32 m0, s7, {WQ_OFF}""")
    if "q" in ROT:
        a("s_mov_b32 s61, m0\ns_lshl_b32 s60, s53, 12")
        for i in range(16):
            a(f"""s_add_u32 m0, s61, s60
            s_lshl_b32 s7, s60, 6
            s_add_u32 s7, s7, s6""")
            a.vmop(f"buffer_load_dwordx4 v29, {R(sWQ)}, s7 offen{nt('wq')} lds", "wq")
            if i < 15:
                a("s_add_u32 s60, s60, 1024\ns_and_b32 s60, s60, 16383")
        a("s_lshr_b32 s60, s2, 5")
    else:
        for i in range(16):
            a.vmop(f"s_nop 0\nbuffer_load_dwordx4 v29, {R(sWQ)}, s6 offen{nt('wq')} lds", "wq")
            if i < 15:
                a(f"s_add_u32 s6, s6, {8*8192}\ns_add_u32 m0, m0, 1024")
            if LNE and i == LNE - 1:
                a("s_mov_b32 s61, s6")
                addr_ln()
                a("s_mov_b32 s6, s61")
    a(f"""s_lshl_b32 s6, s54, 7
    s_lshl_b32 s7, s5, 5
    s_add_u32 s6, s6, s7
    s_mul_i32 s6, s6, 3584
    s_lshl_b32 s7, s55, 7
    s_add_u32 s6, s6, s7
    s_lshl_b32 s7, s5, 15
    s_add_u32 m0, s7, {FF_OFF}""")
    for i in range(4):
        a.vmop(f"s_nop 0\nbuffer_load_dwordx4 v28, {R(sFF)}, s6 offen{nt('ff')} lds", "ff")
        if i < 3:
            a(f"s_add_u32 s6, s6, {8*3584}\ns_add_u32 m0, m0, 1024")
    a(f"""v_lshrrev_b32 v7, 2, v4
    v_and_b32 v2, 3, v4
    v_lshl_add_u32 v7, v7, 3, v2
    v_lshlrev_b32 v7, 13, v7
    v_lshl_add_u32 v7, v3, 4, v7
    s_lshl_b32 s6, s53, 7
    s_lshl_b32 s7, s5, 5
    s_add_u32 s6, s6, s7
    s_lshl_b32 s6, s6, 13
    s_lshl_b32 s7, s3, 8
    s_add_u32 s6, s6, s7
    s_lshl_b32 s7, s52, 7
    s_add_u32 s6, s6, s7
    s_add_u32 s7, s6, 32768""")
    for q in range(2):
        for t in range(2):
            b = 12 + 8 * q + 4 * t
            a.vmop(f"buffer_load_dwordx4 v[{b}:{b+3}], v7, {R(sWUK)}, s{6+q} offen offset:{64*t}{nt('wuk')}", "wuk")
    a(f"""v_mov_b32 v40, -1
    v_mov_b32 v41, -1
    v_mov_b32 v42, -1
    v_mov_b32 v43, -1
    v_lshlrev_b32 v7, 4, v0        ; tid*16
    s_lshl_b32 s6, s59, 2
    s_and_b32 s7, s60, 3
    s_add_u32 s6, s6, s7           ; h*4+cj
    s_lshl_b32 s6, s6, 15
    s_lshr_b32 s7, s60, 2
    s_lshl_b32 s7, s7, 14
    s_add_u32 s6, s6, s7
    s_add_u32 s6, s6, {WS_PART}""")
    for i in range(4):
        a.vmop(f"buffer_store_dwordx4 v[40:43], v7, {R(sWS)}, s6 offen sc1", "rst")
        if i < 3:
            a("s_add_u32 s6, s6, 4096")
    a(f"""s_mul_i32 s6, s2, 4992
    s_mul_i32 s7, s5, 1248
    s_add_u32 s6, s6, s7
    s_add_u32 s6, s6, {WS_SP}""")
    a.vmop(f"buffer_store_dwordx4 v[40:43], v31, {R(sWS)}, s6 offen sc1", "rst")
    a("""v_cmp_gt_u32 vcc, 14, v1
    s_and_saveexec_b64 s[62:63], vcc""")
    a.vmop(f"buffer_store_dwordx4 v[40:43], v31, {R(sWS)}, s6 offen offset:1024 sc1", "rst")
    a(f"""s_lshl_b32 s6, s59, 10
    s_lshl_b32 s7, s60, 7
    s_add_u32 s6, s6, s7
    s_lshl_b32 s7, s5, 5
    s_add_u32 s6, s6, s7
    s_add_u32 s6, s6, {WS_STATS}
    v_cmp_gt_u32 vcc, 2, v1
    s_and_b64 exec, exec, vcc""")
    a.vmop(f"buffer_store_dwordx4 v[40:43], v31, {R(sWS)}, s6 offen sc1", "rst")
    a("s_mov_b64 exec, s[62:63]")
    if PF == 'early':
        prefetch('a')
    ts(a, 1)
    if not LNE:
        addr_ln()
    if PREX:
        a("s_waitcnt lgkmcnt(0)\ns_barrier")
        a("s_lshl_b32 s6, s54, 8\nv_add_u32 v58, s6, v45")
        for t in range(4):
            a(f"ds_read_b128 v[{200+4*t}:{203+4*t}], v58 offset:{64*t}")
        for t in range(16):
            a(f"ds_read_b128 v[{64+4*t}:{67+4*t}], v45 offset:{64*t}")
    a.wait_vm("wq", "ff", extra="lgkmcnt(0)")
    a("s_barrier")
    ts(a, 3)
    NR = 2 if PREX else 3
    D = 6 if PREX else 4
    if not PREX:
        a("s_lshl_b32 s6, s54, 8\nv_add_u32 v58, s6, v45")
    for t in range(4):
        if not PREX:
            a(f"ds_read_b128 v[{200+4*t}:{203+4*t}], v58 offset:{64*t}")
        rb = "v44" if t < 2 else "v47"
        off = FF_OFF + 32768 * (t & 1)
        a(f"ds_read_b64_tr_b16 v[{216+4*t}:{217+4*t}], {rb} offset:{off}")
        a(f"ds_read_b64_tr_b16 v[{218+4*t}:{219+4*t}], {rb} offset:{off+2048}")

    def q_reads(t):
        if not PREX:
            a(f"ds_read_b128 v[{64+4*t}:{67+4*t}], v45 offset:{64*t}")
        rb = "v44" if t < 8 else "v47"
        off = WQ_OFF + 32768 * ((t >> 2) & 1) + 4096 * (t & 3)
        a(f"ds_read_b64_tr_b16 v[{128+4*t}:{129+4*t}], {rb} offset:{off}")
        a(f"ds_read_b64_tr_b16 v[{130+4*t}:{131+4*t}], {rb} offset:{off+2048}")
    q_reads(0)
    for t in range(4):
        a(f"s_waitcnt lgkmcnt({NR*(3-t)+NR})")
        c = "0" if t == 0 else "v[232:235]"
        a(f"v_mfma_f32_16x16x32_bf16 v[232:235], v[{216+4*t}:{219+4*t}], v[{200+4*t}:{203+4*t}], {c}")
    for t in range(1, D + 1):
        q_reads(t)
    for t in range(16):
        ahead = min(D, 15 - t)
        a(f"s_waitcnt lgkmcnt({NR*ahead})")
        acc = 192 + 4 * (t & 1)
        c = "0" if t < 2 else f"v[{acc}:{acc+3}]"
        a(f"v_mfma_f32_16x16x32_bf16 v[{acc}:{acc+3}], v[{128+4*t}:{131+4*t}], v[{64+4*t}:{67+4*t}], {c}")
        if t + D + 1 < 16:
            q_reads(t + D + 1)
    a(f"""s_lshl_b32 s6, s54, 1
    s_add_u32 s6, s6, s56
    s_mul_i32 s6, s6, {4*7168}
    s_lshl_b32 s7, s55, 8
    s_add_u32 s6, s6, s7
    s_lshl_b32 s7, s5, 6
    s_add_u32 s6, s6, s7
    s_add_u32 s6, s6, {WS_GU}
    s_movk_i32 s7, 7168
    v_mul_lo_u32 v58, v4, s7
    v_lshl_add_u32 v58, v3, 4, v58
    v_lshlrev_b32 v59, 7, v4
    v_lshl_add_u32 v59, v3, 3, v59
    s_lshl_b32 s7, s5, 5
    s_add_u32 s7, s7, {L_Q}
    v_add_u32 v59, s7, v59
    v_cmp_gt_u32 vcc, 4, v4
    s_and_saveexec_b64 s[62:63], vcc""")
    a.vmop(f"buffer_store_dwordx4 v[232:235], v58, {R(sDN if (SKIP and MAP) else sWS)}, s6 offen sc1", "gu")
    a(f"""s_nop 4
    v_add_f32 v192, v192, v196
    v_add_f32 v193, v193, v197
    v_add_f32 v194, v194, v198
    v_add_f32 v195, v195, v199
    v_cvt_pk_bf16_f32 v192, v192, v193
    v_cvt_pk_bf16_f32 v193, v194, v195
    ds_write_b64 v59, v[192:193]
    s_mov_b64 exec, s[62:63]
    v_lshlrev_b32 v59, 7, v6
    v_lshl_add_u32 v59, v3, 4, v59
    v_add_u32 v59, {L_Q}, v59
    s_waitcnt lgkmcnt(0)
    s_barrier""")
    ts(a, 4)
    a("""ds_read_b128 v[64:67], v59
    ds_read_b128 v[68:71], v59 offset:64""")
    a(f"""s_lshl_b32 s6, s52, 17
    s_lshr_b32 s7, s3, 4
    s_lshl_b32 s7, s7, 14
    s_add_u32 s6, s6, s7
    s_lshl_b32 s7, s53, 2
    s_add_u32 s7, s7, s5
    s_lshl_b32 s7, s7, 10
    s_add_u32 s6, s6, s7
    s_and_b32 s7, s3, 15
    s_lshl_b32 s7, s7, 4
    s_add_u32 s6, s6, s7
    s_add_u32 s6, s6, {WS_QL}
    v_lshlrev_b32 v58, 15, v4
    v_lshl_add_u32 v58, v3, 8, v58
    s_mov_b32 s7, {f2u(QSCALE):#x}""")
    a.wait_vm("wuk", extra="lgkmcnt(0)")
    for t in range(2):
        for q in range(2):
            b = 12 + 8 * q + 4 * t
            c = "0" if t == 0 else f"v[{72+4*q}:{75+4*q}]"
            a(f"v_mfma_f32_16x16x32_bf16 v[{72+4*q}:{75+4*q}], v[{b}:{b+3}], v[{64+4*t}:{67+4*t}], {c}")
    a("""v_cmp_gt_u32 vcc, 4, v4
    s_and_saveexec_b64 s[62:63], vcc
    s_nop 7""")
    for i in range(8):
        a(f"v_mul_f32 v{72+i}, s7, v{72+i}")
    for i in range(4):
        a(f"v_cvt_pk_bf16_f32 v{72+i}, v{72+2*i}, v{73+2*i}")
    a.vmop(f"buffer_store_dwordx4 v[72:75], v58, {R(sWS)}, s6 offen sc1", "ql")
    a("s_mov_b64 exec, s[62:63]")
    ts(a, 5)
    if PF == 'late':
        prefetch('a')
    a("s_waitcnt vmcnt(0)")
    ts(a, 6)
    if TS:
        a(f"""s_waitcnt lgkmcnt(0)
        s_cmp_lg_u32 s5, 0
        s_cbranch_scc1 A_END
        v_mov_b32 v250, 0""")
        for p in range(7):
            a(f"v_writelane_b32 v250, s{64+2*p}, {p}")
        a(f"""s_lshl_b32 s6, s2, 7
        s_add_u32 s6, s6, {WS_TS}
        v_lshlrev_b32 v251, 2, v1
        v_cmp_gt_u32 vcc, 7, v1
        s_and_saveexec_b64 s[62:63], vcc
        buffer_store_dword v250, v251, {R(sWS)}, s6 offen""")
    a.label("A_END")
    a("s_endpgm")


def part_b(a, env):
    g = env
    L_QL, L_P, L_Q, L_X, L_MX, L_LS, L_CL, L_CT, L_H1, L_DN, WQ_OFF, FF_OFF, L_UV, L_WO = [g[k] for k in 'L_QL L_P L_Q L_X L_MX L_LS L_CL L_CT L_H1 L_DN WQ_OFF FF_OFF L_UV L_WO'.split()]
    if MAP:
        a("""s_bfe_u32 s6, s2, 0x20003      ; k
        s_lshl_b32 s7, s6, 1
        s_add_u32 s7, s7, s2
        s_and_b32 s7, s7, 7
        s_lshl_b32 s6, s6, 3
        s_add_u32 s3, s6, s7           ; h = ((x+2k)&7) + 8k""")
    a(f"""s_lshr_b32 s6, s57, 5          ; b
    s_lshl_b32 s6, s6, 1
    s_add_u32 s6, s6, s58
    s_lshl_b32 s6, s6, 14
    s_lshl_b32 s7, s5, 12
    s_add_u32 s6, s6, s7
    s_add_u32 s6, s6, {WS_QL}
    s_add_u32 s7, s6, 131072""")
    for dh in range(2):
        for tt in range(4):
            b = 128 + 16 * dh + 4 * tt
            a.vmop(f"buffer_load_dwordx4 v[{b}:{b+3}], v31, {R(sWS)}, s{6+dh} offen offset:{1024*tt}", "qlr")
    a(f"""s_mul_i32 s6, s5, 7168
    s_lshl_b32 s7, s59, 8
    s_add_u32 s6, s6, s7
    s_add_u32 s6, s6, {WS_GU}
    v_lshlrev_b32 v58, 2, v1""")
    for km in range(8):
        a.vmop(f"buffer_load_dword v{160+km}, v58, {R(sWS)}, s6 offen", "gur")
        if km < 7:
            a(f"s_add_u32 s6, s6, {4*7168}")
    a("""v_lshrrev_b32 v7, 3, v1
    v_and_b32 v2, 7, v1
    v_lshlrev_b32 v28, 1, v3
    v_xor_b32 v2, v2, v28
    v_lshlrev_b32 v2, 4, v2
    v_lshl_add_u32 v30, v7, 10, v2""")
    a(f"""s_lshl_b32 s6, s59, 6
    s_lshl_b32 s7, s5, 4
    s_add_u32 s6, s6, s7
    s_lshl_b32 s6, s6, 10
    s_lshl_b32 s7, s60, 7
    s_add_u32 s6, s6, s7
    s_lshl_b32 s7, s5, 11
    s_add_u32 m0, s7, {L_DN}""")
    a.vmop(f"s_nop 0\nbuffer_load_dwordx4 v30, {R(sDN)}, s6 offen{nt('dn')} lds", "dn")
    a("s_add_u32 s6, s6, 8192\ns_add_u32 m0, m0, 1024")
    a.vmop(f"s_nop 0\nbuffer_load_dwordx4 v30, {R(sDN)}, s6 offen{nt('dn')} lds", "dn")
    for k in range(8):
        a(f"v_xor_b32 v{32+k}, {k << 5}, v31")
    a("""s_lshl_b32 s61, s57, 17
    s_lshl_b32 s7, s5, 15
    s_add_u32 s61, s61, s7
    s_mov_b32 m0, s7""")

    def ckv_dma(k0, k1):
        for i in range(k0, k1):
            if i % 4 == 0 or i == k0:
                if "c" in ROT:
                    a(f"s_lshl_b32 s7, s5, 15\ns_add_u32 m0, s7, {4096*(i//4)}\ns_lshl_b32 s6, s58, 14\ns_xor_b32 s6, s6, {4096*(i//4)}\ns_add_u32 s6, s6, s61")
                else:
                    a(f"s_lshl_b32 s7, s5, 15\ns_add_u32 m0, s7, {4096*(i//4)}\ns_add_u32 s6, s61, {4096*(i//4)}")
            a.vmop(f"buffer_load_dwordx4 v{200 + (i & 7)}, {R(sCKV)}, s6 offen offset:{1024*(i&3)}{nt('ckv')} lds", "ckv0" if i < 16 else "ckv1")
    ckv_dma(0, NC0)
    a(f"""v_lshl_add_u32 v2, v3, 2, v5   ; rowl
    v_and_b32 v7, 1, v6
    v_lshrrev_b32 v44, 1, v6
    v_lshlrev_b32 v7, 3, v7
    v_lshl_add_u32 v56, v44, 4, v7 ; cc
    v_and_b32 v7, 1, v3
    v_lshlrev_b32 v7, 1, v7
    v_lshrrev_b32 v44, 1, v5
    v_add_u32 v7, v7, v44
    v_lshlrev_b32 v7, 1, v7        ; f3
    s_lshl_b32 s6, s5, 1
    v_xor_b32 v7, s6, v7
    v_lshl_add_u32 v7, v7, 4, v56
    v_lshl_add_u32 v44, v2, 7, v7
    v_add_u32 v47, 0x10000, v44
    v_add_u32 v57, {L_DN}, v44
    v_lshlrev_b32 v45, 10, v6
    v_lshl_add_u32 v45, v3, 4, v45
    v_add_u32 v45, {L_X}, v45
    v_lshrrev_b32 v46, 2, v1
    v_lshlrev_b32 v46, 6, v46
    v_and_b32 v7, 1, v6
    v_lshl_add_u32 v46, v7, 5, v46
    v_lshrrev_b32 v7, 1, v6
    v_lshl_add_u32 v46, v7, 3, v46
    s_lshl_b32 s6, s5, 10
    s_add_u32 s6, s6, {L_X}
    v_add_u32 v46, s6, v46""")
    a("""v_and_b32 v7, 7, v4
    v_lshlrev_b32 v7, 1, v7
    s_lshl_b32 s6, s5, 5
    v_add_u32 v58, s6, v4
    v_lshlrev_b32 v58, 10, v58""")
    for tq in range(4):
        a(f"v_add_u32 v59, {4*tq}, v3\nv_xor_b32 v59, v59, v7\nv_lshl_add_u32 v{24+tq}, v59, 4, v58")
    a(f"v_add_u32 v28, {L_QL}, v31")
    a("""v_and_b32 v7, 1, v3
    v_lshl_add_u32 v7, v7, 2, v5
    v_lshlrev_b32 v7, 1, v7
    v_lshl_add_u32 v58, v2, 10, v56
    s_lshl_b32 s6, s5, 8
    v_add_u32 v58, s6, v58""")
    for n in range(8):
        a(f"v_xor_b32 v59, {2*n}, v7\nv_lshl_add_u32 v{32+n}, v59, 4, v58\nv_add_u32 v{8+n}, 0x10000, v{32+n}")
    a("""v_lshlrev_b32 v58, 1, v3
    v_xor_b32 v58, v58, v4
    v_lshlrev_b32 v58, 4, v58
    v_lshl_add_u32 v192, v3, 13, v58
    v_xor_b32 v193, 0x80, v192
    s_and_b32 s6, s4, 3
    s_lshl_b32 s6, s6, 7
    s_lshl_b32 s7, s5, 5
    s_add_u32 s6, s6, s7
    s_lshl_b32 s6, s6, 13
    s_lshl_b32 s7, s3, 8
    s_add_u32 s52, s6, s7
    v_lshrrev_b32 v58, 5, v1
    v_and_b32 v59, 31, v1""")
    for q in range(4):
        a(f"""v_add_u32 v60, {2*q}, v58
        v_lshlrev_b32 v60, 1, v60
        v_xor_b32 v60, v60, v59
        v_lshlrev_b32 v60, 4, v60
        v_lshl_add_u32 v{194+q}, v58, 10, v60""")
    a("""s_lshl_b32 s6, s3, 17
    s_lshl_b32 s7, s5, 15
    s_add_u32 s6, s6, s7
    s_lshr_b32 s7, s4, 2
    s_lshl_b32 s7, s7, 9
    s_add_u32 s53, s6, s7""")
    wstate = [0]
    a("""s_lshr_b32 s54, s4, 2
    s_lshl_b32 s54, s54, 17
    s_and_b32 s55, s4, 3
    s_lshl_b32 s55, s55, 13""")

    def wload(n):
        for _ in range(n):
            i = wstate[0]
            if i >= 24:
                return
            wstate[0] += 1
            if "w" in ROT:
                if i < 8:
                    a("s_add_u32 s6, s52, s54")
                    a.vmop(f"buffer_load_dwordx4 a[{4*i}:{4*i+3}], v{192+(i&1)}, {R(sWUV)}, s6 offen{nt('wuv')}", "wuv")
                    a(f"s_add_u32 s54, s54, {4*8192}\ns_and_b32 s54, s54, {8*4*8192-1}")
                else:
                    i -= 8
                    a("s_add_u32 s6, s53, s55")
                    a.vmop(f"buffer_load_dwordx4 a[{32+4*i}:{35+4*i}], v{194+(i&3)}, {R(sWO)}, s6 offen{nt('wo')}", "wo")
                    a("s_add_u32 s55, s55, 2048\ns_and_b32 s55, s55, 32767")
            elif i < 8:
                a.vmop(f"buffer_load_dwordx4 a[{4*i}:{4*i+3}], v{192+(i&1)}, {R(sWUV)}, s52 offen{nt('wuv')}", "wuv")
                a(f"s_add_u32 s52, s52, {4*8192}")
            else:
                i -= 8
                a.vmop(f"buffer_load_dwordx4 a[{32+4*i}:{35+4*i}], v{194+(i&3)}, {R(sWO)}, s53 offen{nt('wo')}", "wo")
                a("s_add_u32 s53, s53, 2048")
    a(f"""s_lshl_b32 s6, s5, 12
    v_add_u32 v58, s6, v28""")
    a.wait_vm("qlr")
    for tt in range(4):
        for k in range(4):
            x, y, o = 128 + 4 * tt + k, 144 + 4 * tt + k, 64 + 4 * tt + k
            a(f"""v_lshlrev_b32 v59, 16, v{x}
            v_lshlrev_b32 v60, 16, v{y}
            v_and_b32 v61, 0xffff0000, v{x}
            v_and_b32 v62, 0xffff0000, v{y}
            v_add_f32 v59, v59, v60
            v_add_f32 v61, v61, v62
            v_cvt_pk_bf16_f32 v{o}, v59, v61""")
        a(f"ds_write_b128 v58, v[{64+4*tt}:{67+4*tt}] offset:{1024*tt}")
    a("s_waitcnt lgkmcnt(0)\ns_barrier")
    ts(a, 8)
    ckv_dma(NC0, 32)
    for t in range(16):
        a(f"ds_read_b128 v[{64+4*t}:{67+4*t}], v28 offset:{1024*t}")
    a.wait_vm("gur")
    a(f"""v_add_f32 v160, v160, v162
    v_add_f32 v164, v164, v166
    v_add_f32 v161, v161, v163
    v_add_f32 v165, v165, v167
    v_add_f32 v160, v160, v164
    v_add_f32 v161, v161, v165
    v_mul_f32 v162, {f2u(-LOG2E):#x}, v160
    v_exp_f32 v162, v162
    v_and_b32 v163, 32, v1
    v_lshl_add_u32 v163, v5, 3, v163
    v_add_f32 v162, 1.0, v162
    v_rcp_f32 v162, v162
    v_bfe_u32 v164, v1, 4, 1
    v_lshl_add_u32 v163, v164, 2, v163
    v_add_u32 v163, v163, v6
    v_mul_f32 v160, v160, v162
    v_mul_f32 v160, v160, v161
    v_cvt_pk_bf16_f32 v160, v160, v160
    v_lshlrev_b32 v163, 1, v163
    s_lshl_b32 s6, s5, 7
    s_add_u32 s6, s6, {L_H1}
    v_add_u32 v163, s6, v163
    ds_write_b16 v163, v160""")
    for kb in range(2):
        a.wait_vm('ckv%d' % kb)
        if kb == 1:
            wload(W1)
        for t in range(16):
            a(f"ds_read_b128 v[{128+4*t}:{131+4*t}], v{24+(t&3)} offset:{(t>>2)*256+kb*16384}")
        for t in range(16):
            a(f"s_waitcnt lgkmcnt({15-t})")
            c = "0" if t == 0 else f"v[{48+4*kb}:{51+4*kb}]"
            a(f"v_mfma_f32_16x16x32_bf16 v[{48+4*kb}:{51+4*kb}], v[{128+4*t}:{131+4*t}], v[{64+4*t}:{67+4*t}], {c}")
    ts(a, 9)
    a(f"""v_lshlrev_b32 v58, 4, v4       ; head*16
    s_lshl_b32 s6, s5, 2
    s_add_u32 s6, s6, {L_MX}
    v_add_u32 v59, s6, v58         ; MX[head][w]
    v_add_u32 v58, {L_MX}, v58
    s_nop 4
    v_max3_f32 v60, v48, v49, v50
    v_max3_f32 v60, v60, v51, v52
    v_max3_f32 v60, v60, v53, v54
    v_max_f32 v60, v60, v55""")
    xg_reduce(a, "v60", "v61", "v_max_f32")
    a(f"""ds_write_b32 v59, v60
    s_waitcnt lgkmcnt(0)
    s_barrier
    ds_read_b128 v[128:131], v58
    s_waitcnt lgkmcnt(0)
    v_max3_f32 v60, v128, v129, v130
    v_max_f32 v60, v60, v131        ; m""")
    wload(W2)
    for i in range(8):
        a(f"v_sub_f32 v{48+i}, v{48+i}, v60")
    for i in range(8):
        a(f"v_exp_f32 v{48+i}, v{48+i}")
    a("""s_nop 0
    v_add_f32 v61, v48, v49
    v_add_f32 v62, v50, v51
    v_add_f32 v63, v52, v53
    v_add_f32 v128, v54, v55
    v_add_f32 v61, v61, v62
    v_add_f32 v63, v63, v128
    v_add_f32 v61, v61, v63""")
    for i in range(4):
        a(f"v_cvt_pk_bf16_f32 v{48+i}, v{48+2*i}, v{49+2*i}")
    a(f"""s_lshl_b32 s6, s5, 10
    s_add_u32 s6, s6, {L_P}
    v_add_u32 v62, s6, v31
    ds_write_b128 v62, v[48:51]""")
    xg_reduce(a, "v61", "v63", "v_add_f32")
    a(f"""ds_write_b32 v59, v61 offset:{L_LS-L_MX}
    v_add_u32 v62, {L_P}, v31
    s_waitcnt lgkmcnt(0)
    s_barrier""")
    for u in range(4):
        a(f"ds_read_b128 v[{64+4*u}:{67+4*u}], v62 offset:{1024*u}")
    a(f"ds_read_b128 v[52:55], v58 offset:{L_LS-L_MX}")
    ts(a, 10)

    def pv_reads(u):
        base = 128 + 32 * (u & 1)
        ab = 32 if u < 2 else 8
        off = (u & 1) * 32768
        for n in range(8):
            a(f"ds_read_b64_tr_b16 v[{base+4*n}:{base+4*n+1}], v{ab+n} offset:{off}")
            a(f"ds_read_b64_tr_b16 v[{base+4*n+2}:{base+4*n+3}], v{ab+n} offset:{off+16384}")
    pv_reads(0)
    for u in range(4):
        if u < 3:
            pv_reads(u + 1)
        wload(W3)
        base = 128 + 32 * (u & 1)
        for n in range(8):
            rem = (16 if u < 3 else 0) + 14 - 2 * n
            a(f"s_waitcnt lgkmcnt({min(rem, 15)})")
            c = "0" if u == 0 else f"v[{80+4*n}:{83+4*n}]"
            a(f"v_mfma_f32_16x16x32_bf16 v[{80+4*n}:{83+4*n}], v[{base+4*n}:{base+4*n+3}], v[{64+4*u}:{67+4*u}], {c}")
    if not WPOST:
        wload(24)
    ts(a, 11)
    a("s_barrier")
    a(f"""v_add_f32 v52, v52, v53
    v_add_f32 v54, v54, v55
    v_add_f32 v61, v52, v54         ; L
    s_mov_b32 s61, 0xfffffffe
    s_lshr_b32 s7, s57, 5           ; b
    s_lshl_b32 s6, s58, 6
    s_add_u32 s6, s6, s7            ; (hg*16)*4 + b
    s_lshl_b32 s6, s6, 2
    s_and_b32 s7, s57, 3
    s_add_u32 s6, s6, s7
    s_lshl_b32 s6, s6, 3
    s_bfe_u32 s7, s57, 0x30002      ; (T>>2)&7 = s>>2
    s_add_u32 s6, s6, s7
    s_lshl_b32 s6, s6, 3
    s_add_u32 s6, s6, {WS_STATS}
    v_lshlrev_b32 v58, 10, v4       ; head * 1024
    v_min_u32 v60, s61, v60
    v_min_u32 v61, s61, v61""")
    a(f"""s_lshl_b32 s7, s58, 6
    s_add_u32 s7, s7, s5
    s_lshl_b32 s7, s7, 7
    s_add_u32 s7, s7, s57
    s_lshl_b32 s7, s7, 8
    s_add_u32 s7, s7, {WS_PART}
    v_lshlrev_b32 v59, 17, v4
    v_lshl_add_u32 v59, v3, 4, v59""")
    for np_ in range(4):
        b0 = 80 + 8 * np_
        a(f"""v_cvt_pk_bf16_f32 v{b0}, v{b0}, v{b0+1}
        v_cvt_pk_bf16_f32 v{b0+1}, v{b0+2}, v{b0+3}
        v_cvt_pk_bf16_f32 v{b0+2}, v{b0+4}, v{b0+5}
        v_cvt_pk_bf16_f32 v{b0+3}, v{b0+6}, v{b0+7}
        v_min_u32 v{b0}, s61, v{b0}
        v_min_u32 v{b0+1}, s61, v{b0+1}
        v_min_u32 v{b0+2}, s61, v{b0+2}
        v_min_u32 v{b0+3}, s61, v{b0+3}""")
        a.vmop(f"buffer_store_dwordx4 v[{b0}:{b0+3}], v59, {R(sWS)}, s7 offen offset:{64*np_} sc1", "part")
    a("""s_cmp_lg_u32 s5, 0
    s_cbranch_scc1 NOSTAT
    v_cmp_gt_u32 vcc, 16, v1
    s_and_saveexec_b64 s[62:63], vcc""")
    a(f"buffer_store_dwordx2 v[60:61], v58, {R(sWS)}, s6 offen sc1")
    a("s_mov_b64 exec, s[62:63]")
    a.label("NOSTAT")
    if WPOST:
        wload(24)
    a(f"""s_lshl_b32 s6, s5, 13
    v_add_u32 v58, s6, v31
    s_lshl_b32 s6, s5, 14
    s_add_u32 s6, s6, {L_WO}
    v_add_u32 v59, s6, v31""")
    a.wait_vm("wuv", "wo")
    if "w" in ROT:
        a("""s_lshr_b32 s54, s4, 2
        s_lshl_b32 s54, s54, 12
        s_and_b32 s55, s4, 3
        s_lshl_b32 s55, s55, 12""")
        for i in range(8):
            if i % 4 == 0:
                a(f"s_xor_b32 s6, s54, {1024*i}\nv_add_u32 v60, s6, v58")
            a(f"ds_write_b128 v60, a[{4*i}:{4*i+3}] offset:{L_UV+1024*(i&3)}")
        for i in range(16):
            if i % 4 == 0:
                a(f"s_add_u32 s6, s55, {1024*i}\ns_and_b32 s6, s6, 16383\nv_add_u32 v60, s6, v59")
            a(f"ds_write_b128 v60, a[{32+4*i}:{35+4*i}] offset:{1024*(i&3)}")
    else:
        for i in range(8):
            a(f"ds_write_b128 v58, a[{4*i}:{4*i+3}] offset:{L_UV+1024*i}")
        for i in range(16):
            a(f"ds_write_b128 v59, a[{32+4*i}:{35+4*i}] offset:{1024*i}")
    a(f"""v_lshlrev_b32 v58, 7, v6
    v_lshl_add_u32 v58, v3, 4, v58
    v_add_u32 v58, {L_H1}, v58
    ds_read_b128 v[64:67], v58
    ds_read_b128 v[68:71], v58 offset:64""")
    for t in range(2):
        b = 72 + 4 * t
        a(f"ds_read_b64_tr_b16 v[{b}:{b+1}], v57 offset:{4096*t}")
        a(f"ds_read_b64_tr_b16 v[{b+2}:{b+3}], v57 offset:{4096*t+2048}")
    a(f"""s_lshl_b32 s6, s60, 1
    s_lshr_b32 s7, s5, 1
    s_add_u32 s6, s6, s7
    s_mul_i32 s6, s6, {SP_ROWS*128}
    s_add_u32 s7, s59, 128
    s_lshl_b32 s7, s7, 7
    s_add_u32 s6, s6, s7
    s_and_b32 s7, s5, 1
    s_lshl_b32 s7, s7, 6
    s_add_u32 s6, s6, s7
    s_add_u32 s6, s6, {WS_SP}
    s_mov_b32 s7, {16*SP_ROWS*128}
    v_mul_lo_u32 v63, v4, s7
    v_lshl_add_u32 v63, v3, 4, v63
    s_waitcnt lgkmcnt(0)
    v_mfma_f32_16x16x32_bf16 v[80:83], v[72:75], v[64:67], 0
    v_mfma_f32_16x16x32_bf16 v[80:83], v[76:79], v[68:71], v[80:83]
    v_cmp_gt_u32 vcc, 4, v4
    s_and_saveexec_b64 s[62:63], vcc
    s_nop 7
    v_min_u32 v80, s61, v80
    v_min_u32 v81, s61, v81
    v_min_u32 v82, s61, v82
    v_min_u32 v83, s61, v83
    buffer_store_dwordx4 v[80:83], v63, {R(sWS)}, s6 offen sc1
    s_mov_b64 exec, s[62:63]""")
    ts(a, 12)
    for q in range(2):
        a(f"""s_lshl_b32 s6, s5, 2
        s_add_u32 s6, s6, {2*q}
        v_xor_b32 v58, s6, v7
        v_lshl_add_u32 v58, v58, 4, v56
        v_lshl_add_u32 v{24+q}, v2, 8, v58""")
    for q in range(4):
        a(f"""s_lshl_b32 s6, s5, 3
        s_add_u32 s6, s6, {2*q}
        s_and_b32 s7, s6, 15
        s_and_b32 s6, s6, 16
        v_xor_b32 v58, s7, v7
        v_add_u32 v58, s6, v58
        v_lshl_add_u32 v58, v58, 4, v56
        v_lshl_add_u32 v58, v2, 9, v58
        v_add_u32 v{26+q}, {L_WO}, v58""")
    a(f"""v_lshlrev_b32 v30, 8, v6
    v_lshl_add_u32 v30, v3, 4, v30
    v_add_u32 v30, {L_CL}, v30""")
    a(f"""s_lshl_b32 s54, s3, 2
    s_and_b32 s7, s4, 3
    s_add_u32 s54, s54, s7
    s_lshl_b32 s54, s54, 2
    s_add_u32 s54, s54, s5
    s_lshl_b32 s54, s54, 13
    s_add_u32 s54, s54, {WS_PART}
    s_add_u32 s55, s54, 4096
    s_lshl_b32 s6, s3, 2
    s_add_u32 s6, s6, s5
    s_lshl_b32 s6, s6, 8
    s_add_u32 s6, s6, {WS_STATS}
    v_lshlrev_b32 v58, 6, v3
    s_mov_b32 s7, {SPIN_MAX}""")

    def part_loads():
        for i in range(8):
            a(f"buffer_load_dwordx4 v[{80+4*i}:{83+4*i}], v31, {R(sWS)}, s{54 if i < 4 else 55} offen offset:{1024*(i&3)} sc1")

    OB = 160 if PRE else 128

    def uv_reads():
        for t in range(4):
            for q in range(2):
                b = 128 + 8 * t + 4 * q
                a(f"ds_read_b64_tr_b16 v[{b}:{b+1}], v{24+q} offset:{L_UV+8192*t}")
                a(f"ds_read_b64_tr_b16 v[{b+2}:{b+3}], v{24+q} offset:{L_UV+8192*t+4096}")

    def o_reads(ts_):
        for t in ts_:
            for q in range(4):
                b = OB + 16 * t + 4 * q
                a(f"ds_read_b64_tr_b16 v[{b}:{b+1}], v{26+q} offset:{16384*t}")
                a(f"ds_read_b64_tr_b16 v[{b+2}:{b+3}], v{26+q} offset:{16384*t+8192}")

    def stat_check(pre=False):
        for i in range(4):
            a(f"buffer_load_dwordx4 v[{64+4*i}:{67+4*i}], v58, {R(sWS)}, s6 offen offset:{16*i} sc1")
        if pre:
            a("s_waitcnt lgkmcnt(0)\ns_barrier")
            uv_reads()
            o_reads(range(4))
        a("""s_waitcnt vmcnt(0)
        v_max3_u32 v59, v64, v65, v66""")
        for i in range(6):
            a(f"v_max3_u32 v59, v59, v{67+2*i}, v{68+2*i}")
        a("""v_max_u32 v59, v59, v79
        v_cmp_eq_u32 vcc, -1, v59""")
    if CPOLL:
        part_loads()
    if CPOLL or PRE:
        stat_check(PRE)
        a("s_cbranch_vccz " + ("E2P_MID" if CPOLL else "E2S_DONE"))
    a.label("E2S_POLL")
    stat_check()
    a("""s_cbranch_vccz E2S_DONE
    s_sub_u32 s7, s7, 1
    s_cmp_eq_u32 s7, 0
    s_cbranch_scc1 E2S_DONE
    s_sleep 1
    s_branch E2S_POLL""")
    a.label("E2S_DONE")
    a(f"s_mov_b32 s7, {SPIN_MAX}")
    a.label("E2P_POLL")
    part_loads()
    a.label("E2P_MID")
    ts(a, 13)
    a("""v_max3_f32 v59, v64, v66, v68
    v_max3_f32 v59, v59, v70, v72
    v_max3_f32 v59, v59, v74, v76
    v_max_f32 v59, v59, v78""")
    xg_reduce(a, "v59", "v60", "v_max_f32")
    for i in range(8):
        a(f"v_sub_f32 v{112+i}, v{64+2*i}, v59")
    for i in range(8):
        a(f"v_exp_f32 v{112+i}, v{112+i}")
    a("s_nop 0\nv_mul_f32 v60, v112, v65")
    for i in range(1, 8):
        a(f"v_fmac_f32 v60, v{112+i}, v{65+2*i}")
    xg_reduce(a, "v60", "v61", "v_add_f32")
    a("v_rcp_f32 v60, v60\ns_nop 0")
    for i in range(8):
        a(f"v_mul_f32 v{112+i}, v{112+i}, v60")
    a("""s_waitcnt vmcnt(0)
    v_max3_u32 v59, v80, v81, v82""")
    for i in range(14):
        a(f"v_max3_u32 v59, v59, v{83+2*i}, v{84+2*i}")
    a("""v_max_u32 v59, v59, v111
    v_cmp_eq_u32 vcc, -1, v59
    s_cbranch_vccz E2P_DONE
    s_sub_u32 s7, s7, 1
    s_cmp_eq_u32 s7, 0
    s_cbranch_scc1 E2P_DONE
    s_branch E2P_POLL""")
    a.label("E2P_DONE")
    ts(a, 14)
    for i in range(8):
        for k in range(4):
            src = 80 + 4 * i + k
            a(f"v_lshlrev_b32 v59, 16, v{src}\nv_and_b32 v60, 0xffff0000, v{src}")
            if i == 0:
                a(f"v_mul_f32 v{120+2*k}, v112, v59\nv_mul_f32 v{121+2*k}, v112, v60")
            else:
                a(f"v_fmac_f32 v{120+2*k}, v{112+i}, v59\nv_fmac_f32 v{121+2*k}, v{112+i}, v60")
    for k in range(8):
        xg_reduce(a, f"v{120+k}", "v59", "v_add_f32")
    for k in range(4):
        a(f"v_cvt_pk_bf16_f32 v{120+k}, v{120+2*k}, v{121+2*k}")
    a(f"""s_lshl_b32 s6, s5, 8
    s_add_u32 s6, s6, {L_CL}
    v_lshlrev_b32 v59, 4, v4
    v_add_u32 v59, s6, v59
    ds_write_b128 v59, v[120:123]
    s_waitcnt lgkmcnt(0)
    s_barrier""")
    for t in range(4):
        a(f"ds_read_b128 v[{64+4*t}:{67+4*t}], v30 offset:{64*t}")
    if not PRE:
        uv_reads()
    for t in range(4):
        for q in range(2):
            b = 128 + 8 * t + 4 * q
            if not PRE:
                a(f"s_waitcnt lgkmcnt({14 - 4*t - 2*q})")
            elif q == 0:
                a(f"s_waitcnt lgkmcnt({3 - t})")
            c = "0" if t == 0 else f"v[{80+4*q}:{83+4*q}]"
            a(f"v_mfma_f32_16x16x32_bf16 v[{80+4*q}:{83+4*q}], v[{b}:{b+3}], v[{64+4*t}:{67+4*t}], {c}")
    if not PRE:
        o_reads((2, 3))
    a(f"""v_lshlrev_b32 v59, 8, v4
    v_lshl_add_u32 v59, v3, 4, v59
    s_lshl_b32 s6, s5, 6
    s_add_u32 s6, s6, {L_CT}
    v_add_u32 v59, s6, v59
    v_cmp_gt_u32 vcc, 4, v4
    s_nop 2
    v_cvt_pk_bf16_f32 v80, v80, v81
    v_cvt_pk_bf16_f32 v81, v82, v83
    v_cvt_pk_bf16_f32 v82, v84, v85
    v_cvt_pk_bf16_f32 v83, v86, v87
    s_and_saveexec_b64 s[62:63], vcc
    ds_write_b128 v59, v[80:83]
    s_mov_b64 exec, s[62:63]""")
    if not PRE:
        o_reads((0, 1))
    a("s_waitcnt lgkmcnt(0)\ns_barrier")
    a(f"v_add_u32 v30, {L_CT-L_CL}, v30")
    for t in range(4):
        a(f"ds_read_b128 v[{64+4*t}:{67+4*t}], v30 offset:{64*t}")
    for t in range(4):
        a(f"s_waitcnt lgkmcnt({3-t})")
        for q in range(4):
            b = OB + 16 * t + 4 * q
            c = "0" if t == 0 else f"v[{80+4*q}:{83+4*q}]"
            a(f"v_mfma_f32_16x16x32_bf16 v[{80+4*q}:{83+4*q}], v[{b}:{b+3}], v[{64+4*t}:{67+4*t}], {c}")
    a(f"""s_lshr_b32 s6, s4, 2
    s_lshl_b32 s6, s6, 3
    s_lshl_b32 s7, s5, 1
    s_add_u32 s6, s6, s7
    s_mul_i32 s6, s6, {SP_ROWS*128}
    s_lshl_b32 s7, s3, 2
    s_and_b32 s61, s4, 3
    s_add_u32 s7, s7, s61
    s_lshl_b32 s7, s7, 7
    s_add_u32 s6, s6, s7
    s_add_u32 s6, s6, {WS_SP}
    s_add_u32 s7, s6, {SP_ROWS*128}
    s_mov_b32 s61, 0xfffffffe
    v_cmp_gt_u32 vcc, 4, v4
    s_and_saveexec_b64 s[62:63], vcc
    s_nop 2""")
    for i in range(16):
        a(f"v_min_u32 v{80+i}, s61, v{80+i}")
    a(f"""buffer_store_dwordx4 v[80:83], v63, {R(sWS)}, s6 offen sc1
    buffer_store_dwordx4 v[84:87], v63, {R(sWS)}, s6 offen offset:64 sc1
    buffer_store_dwordx4 v[88:91], v63, {R(sWS)}, s7 offen sc1
    buffer_store_dwordx4 v[92:95], v63, {R(sWS)}, s7 offen offset:64 sc1
    s_mov_b64 exec, s[62:63]""")
    ts(a, 15)
    a(f"""s_cmp_ge_u32 s2, 64
    s_cbranch_scc1 B_FIN
    v_lshrrev_b32 v2, 3, v0
    v_and_b32 v7, 7, v0            ; chunk
    s_mul_i32 s6, s2, {SP_ROWS*128}
    s_add_u32 s6, s6, {WS_SP}
    v_lshlrev_b32 v58, 4, v0       ; tid*16
    s_lshl_b32 s7, s2, 6
    v_lshlrev_b32 v59, 1, v0
    buffer_load_ushort v28, v59, {R(sX)}, s7 offen
    v_mov_b32 v24, 0
    v_mov_b32 v25, 0
    v_mov_b32 v26, 0
    v_mov_b32 v27, 0
    s_add_u32 s52, s6, 4096
    s_add_u32 s53, s6, 8192
    s_add_u32 s54, s6, 12288
    s_add_u32 s55, s6, 16384
    v_cmp_gt_u32 s[56:57], 28, v2
    s_mov_b32 s58, {SPIN_MAX}""")
    a.label("E3_POLL")
    a(f"""buffer_load_dwordx4 v[8:11], v58, {R(sWS)}, s6 offen sc1
    buffer_load_dwordx4 v[12:15], v58, {R(sWS)}, s52 offen sc1
    buffer_load_dwordx4 v[16:19], v58, {R(sWS)}, s53 offen sc1
    buffer_load_dwordx4 v[20:23], v58, {R(sWS)}, s54 offen sc1
    s_mov_b64 exec, s[56:57]
    buffer_load_dwordx4 v[24:27], v58, {R(sWS)}, s55 offen sc1
    s_mov_b64 exec, -1
    s_waitcnt vmcnt(0)
    v_max3_u32 v29, v8, v9, v10""")
    for i in range(8):
        a(f"v_max3_u32 v29, v29, v{11+2*i}, v{12+2*i}")
    a("""v_max_u32 v29, v29, v27
    v_cmp_eq_u32 vcc, -1, v29
    s_cbranch_vccz E3_DONE
    s_sub_u32 s58, s58, 1
    s_cmp_eq_u32 s58, 0
    s_cbranch_scc1 E3_DONE
    s_branch E3_POLL""")
    a.label("E3_DONE")
    ts(a, 16)
    for i in range(4):
        a(f"v_add_f32 v{8+i}, v{8+i}, v{12+i}\nv_add_f32 v{16+i}, v{16+i}, v{20+i}\nv_add_f32 v{8+i}, v{8+i}, v{16+i}")
    for r in list(range(8, 12)) + list(range(24, 28)):
        a(f"s_nop 1\nv_add_f32_dpp v{r}, v{r}, v{r} row_ror:8 row_mask:0xf bank_mask:0xf")
        xg_reduce(a, f"v{r}", "v29", "v_add_f32")
    L_R = L_QL
    a(f"""s_lshl_b32 s6, s5, 8
    s_add_u32 s6, s6, {L_R}
    v_lshlrev_b32 v30, 4, v7
    v_add_u32 v30, s6, v30
    v_cmp_gt_u32 vcc, 8, v1
    s_and_saveexec_b64 s[62:63], vcc
    ds_write_b128 v30, v[8:11]
    ds_write_b128 v30, v[24:27] offset:128
    s_mov_b64 exec, s[62:63]
    s_waitcnt lgkmcnt(0)
    s_barrier
    v_cmp_gt_u32 vcc, 32, v0
    s_and_saveexec_b64 s[62:63], vcc
    s_cbranch_execz B_FIN
    v_lshlrev_b32 v30, 2, v0
    v_add_u32 v30, {L_R}, v30""")
    for w in range(4):
        a(f"ds_read_b32 v{8+w}, v30 offset:{256*w}\nds_read_b32 v{12+w}, v30 offset:{256*w+128}")
    a(f"""s_waitcnt lgkmcnt(0)
    v_add_f32 v8, v8, v9
    v_add_f32 v10, v10, v11
    v_add_f32 v8, v8, v10           ; s
    v_add_f32 v12, v12, v13
    v_add_f32 v14, v14, v15
    v_add_f32 v12, v12, v14         ; ffn
    v_mul_f32 v13, {f2u(-LOG2E):#x}, v12
    v_exp_f32 v13, v13
    s_nop 0
    v_add_f32 v13, 1.0, v13
    v_rcp_f32 v13, v13
    s_nop 0
    v_mul_f32 v12, v12, v13         ; silu(ffn)
    v_lshlrev_b32 v28, 16, v28
    v_fmac_f32 v28, v8, v12
    v_cvt_pk_bf16_f32 v28, v28, v28
    buffer_store_short v28, v59, {R(sOUT)}, s7 offen""")
    a.label("B_FIN")
    if TS:
        a("s_mov_b64 exec, -1\ns_waitcnt vmcnt(0)")
        ts(a, 17)
        a(f"""s_waitcnt lgkmcnt(0)
        s_cmp_lg_u32 s5, 0
        s_cbranch_scc1 B_END
        v_mov_b32 v250, 0""")
        for p in range(7, 18):
            a(f"v_writelane_b32 v250, s{64+2*p}, {p}")
        a(f"""s_lshl_b32 s6, s2, 7
        s_add_u32 s6, s6, {WS_TS}
        v_lshlrev_b32 v251, 2, v1
        v_subrev_u32 v252, 7, v1
        v_cmp_gt_u32 vcc, 11, v252
        s_and_saveexec_b64 s[62:63], vcc
        buffer_store_dword v250, v251, {R(sWS)}, s6 offen""")
    a.label("B_END")
    a("s_endpgm")


def main():
    ref = open(f"cdna_kernels/{NAME}.s.ref").read()
    head = []
    for line in ref.split("\n"):
        if line.startswith("; @launch") or line.startswith("; Override") or line.startswith("; grid="):
            continue
        if line.startswith(";"):
            head.append(line)
        else:
            break
    ks = [kern("A"), kern("B")]
    out = "\n".join(head) + "\n"
    for txt, name, grid, lds in ks:
        out += f"; @launch kernel={name} grid=({grid},1,1) block=(256,1,1) lds={lds}\n"
    out += '.amdgcn_target "amdgcn-amd-amdhsa--gfx950"\n.text\n'
    for txt, name, grid, lds in ks:
        out += txt
    out += '.section .rodata,"a"\n'
    for txt, name, grid, lds in ks:
        out += f""".p2align 6
.amdhsa_kernel {name}
  .amdhsa_next_free_vgpr 512
  .amdhsa_next_free_sgpr 102
  .amdhsa_accum_offset 256
  .amdhsa_group_segment_fixed_size 0
  .amdhsa_kernarg_size 104
  .amdhsa_user_sgpr_count 2
  .amdhsa_user_sgpr_kernarg_segment_ptr 1
  .amdhsa_system_sgpr_workgroup_id_x 1
.end_amdhsa_kernel
"""
    dst = sys.argv[1] if len(sys.argv) > 1 else f"cdna_kernels/{NAME}.s"
    open(dst, "w").write(out)
    print("wrote", dst, len(out))


if __name__ == "__main__":
    main()
```

```python
import sys
import os
import struct

NAME = "recurrent_scan__compressed_kv_cla__swiglu_ffn__decode"

WS_QL = 0x000000
WS_GU = 0x040000
WS_STATS = 0x090000
WS_SP = 0x100000
WS_PART = 0x400000
WS_TS = 0x8000000
WS_BYTES = 0x10000000
SP_ROWS = 156

QSCALE = (128 ** -0.5) * 1.4426950408889634
LOG2E = 1.4426950408889634
DIAG = bool(os.environ.get("DIAG"))
TS = bool(os.environ.get("TS")) or DIAG
SPIN_MAX = 40000
NT = set(os.environ.get("NT", "").split(","))


def nt(tag):
    return " nt" if tag in NT or "all" in NT else ""


PF = os.environ.get("PF", "")
PFN = int(os.environ.get("PFN", "16"))
PFW = int(os.environ.get("PFW", "0"))
P2A = 8
ROT = os.environ.get("ROT", "")
NC0 = int(os.environ.get("NC0", "16"))
W1 = int(os.environ.get("W1", "6"))
W2 = int(os.environ.get("W2", "4"))
W3 = int(os.environ.get("W3", "0"))
SKIP = int(os.environ.get("SKIP", "1"))
WPOST = int(os.environ.get("WPOST", "1"))
CPOLL = int(os.environ.get("CPOLL", "0"))
PRE = int(os.environ.get("PRE", "1"))
PREX = int(os.environ.get("PREX", "1"))
LNE = int(os.environ.get("LNE", "8"))
PXE = int(os.environ.get("PXE", "1"))
RSTL = int(os.environ.get("RSTL", "0"))
MAP = int(os.environ.get("MAP", "1"))


def f2u(x):
    return struct.unpack("<I", struct.pack("<f", x))[0]


class A:
    def __init__(self):
        self.l = []
        self.vm = []

    def __call__(self, s):
        for line in s.strip("\n").split("\n"):
            line = line.strip()
            if line:
                self.l.append("    " + line)

    def label(self, s):
        self.l.append(s + ":")

    def raw(self, s):
        self.l.append(s)

    def text(self):
        return "\n".join(self.l) + "\n"

    def vmop(self, s, tag):
        self(s)
        self.vm.append(tag)

    def wait_vm(self, *tags, extra=""):
        last = max(i for i, t in enumerate(self.vm) if t in tags)
        n = len(self.vm) - 1 - last
        assert n <= 63, n
        self(f"s_waitcnt vmcnt({n}) {extra}")


def srd(a, d, lo, nbytes):
    a(f"""s_mov_b32 s{d}, s{lo}
    s_mov_b32 s{d+1}, s{lo+1}
    s_mov_b32 s{d+2}, {nbytes}
    s_mov_b32 s{d+3}, 0x00020000""")


def ts(a, p):
    if TS:
        a(f"s_memrealtime s[{64+2*p}:{65+2*p}]")


def xg_reduce(a, v, t, op):
    a(f"""v_mov_b32 {t}, {v}
    s_nop 1
    v_permlane16_swap_b32 {v}, {t}
    s_nop 1
    {op} {v}, {v}, {t}
    v_mov_b32 {t}, {v}
    s_nop 1
    v_permlane32_swap_b32 {v}, {t}
    s_nop 1
    {op} {v}, {v}, {t}""")


def wave_sum(a, v, t):
    for r in (8, 4, 2, 1):
        a(f"s_nop 1\nv_add_f32_dpp {v}, {v}, {v} row_ror:{r} row_mask:0xf bank_mask:0xf")
    xg_reduce(a, v, t, "v_add_f32")


sX, sCKV, sWQ, sWUK, sWUV, sWO, sFF, sWS, sDN, sOUT, sDBG = 8, 12, 16, 20, 24, 28, 32, 36, 40, 44, 48


def R(d):
    return f"s[{d}:{d+3}]"


def kern(part):
    a = A()
    name = "k" + part.lower() + "_kernel"
    a.raw(f".globl {name}")
    a.raw(".p2align 8")
    a.raw(f".type {name},@function")
    a.label(name)
    L_QL = 131072
    L_P = L_QL + 16384
    L_Q = L_P
    L_X = L_P + 4096
    L_MX, L_LS, L_CL, L_CT, L_H1 = L_X, L_X + 256, L_X + 1024, L_X + 2048, L_X + 3072
    L_DN = L_X + 4096
    lds = L_DN + 8192
    WQ_OFF, FF_OFF = 12288, 28672
    L_UV, L_WO = 0, 32768
    if TS:
        a("s_getpc_b64 s[100:101]")
    JOB = "s_min_u32 s6, s2, 223"
    if part == 'A' and SKIP and MAP:
        JOB = """s_and_b32 s61, s2, 31
    s_cmp_gt_u32 s4, 1
    s_cselect_b32 s54, 1, 0
    s_cmp_gt_u32 s4, 5
    s_cselect_b32 s55, 1, 0
    s_sub_u32 s56, s4, s54
    s_sub_u32 s56, s56, s55
    s_lshl_b32 s56, s56, 5
    s_add_u32 s56, s56, s61
    s_lshr_b32 s55, s4, 2
    s_lshl_b32 s55, s55, 4
    s_bfe_u32 s54, s2, 0x20003
    s_lshl_b32 s54, s54, 2
    s_add_u32 s55, s55, s54
    s_and_b32 s54, s2, 3
    s_add_u32 s55, s55, s54
    s_add_u32 s55, s55, 192        ; job of p in {1,5}, x >= 4
    s_and_b32 s54, s4, 3
    s_cmp_eq_u32 s54, 1
    s_cselect_b32 s6, s55, s56
    s_cselect_b32 s61, 0, 4
    s_and_b32 s54, s2, 4
    s_or_b32 s61, s61, s54"""
    a(f"""s_load_dwordx16 s[64:79], s[0:1], 0
    s_load_dwordx8 s[80:87], s[0:1], 64
    s_load_dwordx2 s[88:89], s[0:1], 96
    s_cmp_ge_u32 s2, 256
    s_cbranch_scc1 {part}_END
    v_and_b32 v1, 63, v0
    v_lshrrev_b32 v2, 6, v0
    s_and_b32 s3, s2, 7
    v_readfirstlane_b32 s5, v2
    s_lshr_b32 s6, s2, 3
    s_and_b32 s7, s6, 3
    s_lshl_b32 s7, s7, 3
    s_or_b32 s3, s3, s7            ; h
    s_lshr_b32 s4, s2, 5           ; j
    s_and_b32 s52, s4, 1           ; dh
    s_lshr_b32 s53, s4, 1          ; cs
    {JOB}
    s_and_b32 s54, s6, 3           ; ks
    s_lshr_b32 s7, s6, 2           ; cb 0..55
    s_cmp_ge_u32 s7, 28
    s_cselect_b32 s56, 1, 0        ; mat
    s_mul_i32 s55, s56, 28
    s_sub_u32 s55, s7, s55         ; cbk
    s_lshr_b32 s59, s6, 3          ; fs 0..27
    s_and_b32 s60, s6, 7           ; ms 0..7
    s_lshr_b32 s6, s2, 3
    s_and_b32 s58, s6, 1           ; hg
    s_lshr_b32 s6, s2, 4
    s_lshl_b32 s6, s6, 3
    s_and_b32 s57, s2, 7
    s_or_b32 s57, s57, s6          ; T 0..127
    v_lshrrev_b32 v3, 4, v1        ; g
    v_and_b32 v4, 15, v1           ; i16
    v_bfe_u32 v5, v1, 2, 2         ; r
    v_and_b32 v6, 3, v1            ; c'
    v_lshlrev_b32 v31, 4, v1       ; l*16
    s_waitcnt lgkmcnt(0)""")
    srd(a, sX, 64, 4096)
    srd(a, sWQ, 68, 4194304)
    a("""s_cmp_eq_u32 s56, 1
    s_cselect_b32 s78, s80, s78
    s_cselect_b32 s79, s81, s79""")
    srd(a, sFF, 78, 1835008)
    srd(a, sWUK, 70, 4194304)
    srd(a, sWS, 88, WS_BYTES)
    srd(a, sDN, 82, 1835008)
    srd(a, sCKV, 66, 16777216)
    srd(a, sWUV, 72, 4194304)
    srd(a, sWO, 74, 4194304)
    srd(a, sOUT, 84, 4096)
    srd(a, sDBG, 86, 256)
    if part == 'A' and SKIP and MAP:
        a(f"""s_mov_b32 s40, s88
        s_mov_b32 s41, s89
        s_cmp_eq_u32 s61, 0
        s_cselect_b32 s34, 0, 1835008
        s_cselect_b32 s42, 0, {WS_BYTES}""")
    ts(a, 0 if part == 'A' else 7)
    if part == 'A':
        part_a(a, locals())
    else:
        part_b(a, locals())
    return a.text(), name, 256, lds


def part_a(a, env):
    g = env
    L_QL, L_P, L_Q, L_X, L_MX, L_LS, L_CL, L_CT, L_H1, L_DN, WQ_OFF, FF_OFF, L_UV, L_WO = [g[k] for k in 'L_QL L_P L_Q L_X L_MX L_LS L_CL L_CT L_H1 L_DN WQ_OFF FF_OFF L_UV L_WO'.split()]

    def prefetch(dst):
        a(f"""s_lshl_b32 s6, s57, 17
        s_lshl_b32 s7, s58, 16
        s_add_u32 s6, s6, s7
        s_mul_i32 s7, s5, {PFN*1024}
        s_add_u32 s6, s6, s7""")
        for i in range(PFN):
            if i and i % 4 == 0:
                a("s_add_u32 s6, s6, 4096")
            a.vmop(f"buffer_load_dwordx4 {dst}[{4*(i%16)}:{4*(i%16)+3}], v31, {R(sCKV)}, s6 offen offset:{1024*(i&3)}", "pf")
        if PFW:
            for sr in (sWUV, sWO):
                a("s_lshl_b32 s6, s2, 14\ns_lshl_b32 s7, s5, 12\ns_add_u32 s6, s6, s7")
                for i in range(4):
                    a.vmop(f"buffer_load_dwordx4 {dst}[{4*i}:{4*i+3}], v31, {R(sr)}, s6 offen offset:{1024*i}", "pf")
    if MAP:
        a("""s_mov_b32 s59, s3
        s_mov_b32 s60, s4
        s_and_b32 s6, s2, 7            ; x
        s_lshr_b32 s7, s2, 5           ; p
        s_bfe_u32 s53, s2, 0x20003
        s_add_u32 s3, s6, s7
        s_and_b32 s3, s3, 3
        s_lshl_b32 s3, s3, 3
        s_add_u32 s3, s3, s7           ; h = p + 8*((x+p)&3)
        s_lshr_b32 s6, s6, 2
        s_xor_b32 s6, s6, s7
        s_and_b32 s52, s6, 1           ; dh""")
    else:
        a("s_mov_b32 s59, s3\ns_mov_b32 s60, s4")
    def addr_ln():
        a(f"""v_lshl_add_u32 v2, v3, 2, v5   ; rowl
        v_and_b32 v7, 1, v6
        v_lshrrev_b32 v44, 1, v6
        v_lshlrev_b32 v7, 3, v7
        v_lshl_add_u32 v56, v44, 4, v7 ; cc
        v_and_b32 v7, 1, v3
        v_lshlrev_b32 v7, 1, v7
        v_lshrrev_b32 v44, 1, v5
        v_add_u32 v7, v7, v44
        v_lshlrev_b32 v7, 1, v7        ; f3
        s_lshl_b32 s6, s5, 1
        v_xor_b32 v7, s6, v7
        v_lshl_add_u32 v7, v7, 4, v56
        v_lshl_add_u32 v44, v2, 7, v7
        v_add_u32 v47, 0x10000, v44
        v_add_u32 v57, {L_DN}, v44
        v_lshlrev_b32 v45, 10, v6
        v_lshl_add_u32 v45, v3, 4, v45
        v_add_u32 v45, {L_X}, v45
        v_lshrrev_b32 v46, 2, v1
        v_lshlrev_b32 v46, 6, v46
        v_and_b32 v7, 1, v6
        v_lshl_add_u32 v46, v7, 5, v46
        v_lshrrev_b32 v7, 1, v6
        v_lshl_add_u32 v46, v7, 3, v46
        s_lshl_b32 s6, s5, 10
        s_add_u32 s6, s6, {L_X}
        v_add_u32 v46, s6, v46""")
        a.wait_vm("x")
        ts(a, 2)
        for i in range(4):
            a(f"v_lshlrev_b32 v{48+2*i}, 16, v{8+i}\nv_and_b32 v{49+2*i}, 0xffff0000, v{8+i}")
        a("""v_add_f32 v58, v48, v49
        v_add_f32 v59, v50, v51
        v_add_f32 v60, v52, v53
        v_add_f32 v61, v54, v55
        v_add_f32 v58, v58, v59
        v_add_f32 v60, v60, v61
        v_add_f32 v58, v58, v60""")
        wave_sum(a, "v58", "v59")
        a(f"v_mul_f32 v58, {f2u(1.0/512):#x}, v58")
        for i in range(8):
            a(f"v_sub_f32 v{48+i}, v{48+i}, v58")
        a("v_mul_f32 v59, v48, v48")
        for i in range(1, 8):
            a(f"v_fmac_f32 v59, v{48+i}, v{48+i}")
        wave_sum(a, "v59", "v60")
        a(f"""v_mov_b32 v60, {f2u(1e-5):#x}
        v_fmac_f32 v60, {f2u(1.0/512):#x}, v59
        v_rsq_f32 v60, v60
        s_nop 0""")
        for i in range(8):
            a(f"v_mul_f32 v{48+i}, v{48+i}, v60")
        for i in range(4):
            a(f"v_cvt_pk_bf16_f32 v{60+i}, v{48+2*i}, v{49+2*i}")
        a("""ds_write_b64 v46, v[60:61]
        ds_write_b64 v46, v[62:63] offset:16""")

    def prex():
        a("s_waitcnt lgkmcnt(0)\ns_barrier")
        a("s_lshl_b32 s6, s54, 8\nv_add_u32 v58, s6, v45")
        for t in range(4):
            a(f"ds_read_b128 v[{200+4*t}:{203+4*t}], v58 offset:{64*t}")
        for t in range(16):
            a(f"ds_read_b128 v[{64+4*t}:{67+4*t}], v45 offset:{64*t}")

    a("s_lshl_b32 s6, s5, 10")
    a.vmop(f"buffer_load_dwordx4 v[8:11], v31, {R(sX)}, s6 offen", "x")
    a(f"""v_lshrrev_b32 v7, 3, v1        ; l>>3
    v_and_b32 v2, 7, v1
    v_lshlrev_b32 v28, 1, v3
    v_xor_b32 v2, v2, v28
    v_lshlrev_b32 v2, 4, v2
    v_lshl_add_u32 v29, v7, 13, v2 ; w_q voff
    s_movk_i32 s6, 3584
    v_mul_lo_u32 v28, v7, s6
    v_add_u32 v28, v28, v2
    v_lshl_add_u32 v30, v7, 10, v2
    s_lshl_b32 s6, s5, 20
    s_lshl_b32 s7, s3, 8
    s_add_u32 s6, s6, s7
    s_lshl_b32 s7, s52, 7
    s_add_u32 s6, s6, s7
    s_lshl_b32 s7, s5, 15
    s_add_u32 m0, s7, {WQ_OFF}""")
    if "q" in ROT:
        a("s_mov_b32 s61, m0\ns_lshl_b32 s60, s53, 12")
        for i in range(16):
            a(f"""s_add_u32 m0, s61, s60
            s_lshl_b32 s7, s60, 6
            s_add_u32 s7, s7, s6""")
            a.vmop(f"buffer_load_dwordx4 v29, {R(sWQ)}, s7 offen{nt('wq')} lds", "wq")
            if i < 15:
                a("s_add_u32 s60, s60, 1024\ns_and_b32 s60, s60, 16383")
        a("s_lshr_b32 s60, s2, 5")
    else:
        for i in range(16):
            a.vmop(f"s_nop 0\nbuffer_load_dwordx4 v29, {R(sWQ)}, s6 offen{nt('wq')} lds", "wq")
            if i < 15:
                a(f"s_add_u32 s6, s6, {8*8192}\ns_add_u32 m0, m0, 1024")
            if LNE and i == LNE - 1:
                a("s_mov_b32 s61, s6")
                addr_ln()
                if PREX and PXE:
                    prex()
                a("s_mov_b32 s6, s61")
    a(f"""s_lshl_b32 s6, s54, 7
    s_lshl_b32 s7, s5, 5
    s_add_u32 s6, s6, s7
    s_mul_i32 s6, s6, 3584
    s_lshl_b32 s7, s55, 7
    s_add_u32 s6, s6, s7
    s_lshl_b32 s7, s5, 15
    s_add_u32 m0, s7, {FF_OFF}""")
    for i in range(4):
        a.vmop(f"s_nop 0\nbuffer_load_dwordx4 v28, {R(sFF)}, s6 offen{nt('ff')} lds", "ff")
        if i < 3:
            a(f"s_add_u32 s6, s6, {8*3584}\ns_add_u32 m0, m0, 1024")
    a(f"""v_lshrrev_b32 v7, 2, v4
    v_and_b32 v2, 3, v4
    v_lshl_add_u32 v7, v7, 3, v2
    v_lshlrev_b32 v7, 13, v7
    v_lshl_add_u32 v7, v3, 4, v7
    s_lshl_b32 s6, s53, 7
    s_lshl_b32 s7, s5, 5
    s_add_u32 s6, s6, s7
    s_lshl_b32 s6, s6, 13
    s_lshl_b32 s7, s3, 8
    s_add_u32 s6, s6, s7
    s_lshl_b32 s7, s52, 7
    s_add_u32 s6, s6, s7
    s_add_u32 s7, s6, 32768""")
    for q in range(2):
        for t in range(2):
            b = 12 + 8 * q + 4 * t
            a.vmop(f"buffer_load_dwordx4 v[{b}:{b+3}], v7, {R(sWUK)}, s{6+q} offen offset:{64*t}{nt('wuk')}", "wuk")
    def resets():
        a(f"""v_mov_b32 v40, -1
        v_mov_b32 v41, -1
        v_mov_b32 v42, -1
        v_mov_b32 v43, -1
        v_lshlrev_b32 v7, 4, v0        ; tid*16
        s_lshl_b32 s6, s59, 2
        s_and_b32 s7, s60, 3
        s_add_u32 s6, s6, s7           ; h*4+cj
        s_lshl_b32 s6, s6, 15
        s_lshr_b32 s7, s60, 2
        s_lshl_b32 s7, s7, 14
        s_add_u32 s6, s6, s7
        s_add_u32 s6, s6, {WS_PART}""")
        for i in range(4):
            a.vmop(f"buffer_store_dwordx4 v[40:43], v7, {R(sWS)}, s6 offen sc1", "rst")
            if i < 3:
                a("s_add_u32 s6, s6, 4096")
        a(f"""s_mul_i32 s6, s2, 4992
        s_mul_i32 s7, s5, 1248
        s_add_u32 s6, s6, s7
        s_add_u32 s6, s6, {WS_SP}""")
        a.vmop(f"buffer_store_dwordx4 v[40:43], v31, {R(sWS)}, s6 offen sc1", "rst")
        a("""v_cmp_gt_u32 vcc, 14, v1
        s_and_saveexec_b64 s[62:63], vcc""")
        a.vmop(f"buffer_store_dwordx4 v[40:43], v31, {R(sWS)}, s6 offen offset:1024 sc1", "rst")
        a(f"""s_lshl_b32 s6, s59, 10
        s_lshl_b32 s7, s60, 7
        s_add_u32 s6, s6, s7
        s_lshl_b32 s7, s5, 5
        s_add_u32 s6, s6, s7
        s_add_u32 s6, s6, {WS_STATS}
        v_cmp_gt_u32 vcc, 2, v1
        s_and_b64 exec, exec, vcc""")
        a.vmop(f"buffer_store_dwordx4 v[40:43], v31, {R(sWS)}, s6 offen sc1", "rst")
        a("s_mov_b64 exec, s[62:63]")
    if not RSTL:
        resets()
    if PF == 'early':
        prefetch('a')
    ts(a, 1)
    if not LNE:
        addr_ln()
    if PREX and not (LNE and PXE):
        prex()
    a.wait_vm("wq", "ff", extra="lgkmcnt(0)")
    a("s_barrier")
    ts(a, 3)
    if RSTL:
        resets()
    NR = 2 if PREX else 3
    D = 6 if PREX else 4
    if not PREX:
        a("s_lshl_b32 s6, s54, 8\nv_add_u32 v58, s6, v45")
    for t in range(4):
        if not PREX:
            a(f"ds_read_b128 v[{200+4*t}:{203+4*t}], v58 offset:{64*t}")
        rb = "v44" if t < 2 else "v47"
        off = FF_OFF + 32768 * (t & 1)
        a(f"ds_read_b64_tr_b16 v[{216+4*t}:{217+4*t}], {rb} offset:{off}")
        a(f"ds_read_b64_tr_b16 v[{218+4*t}:{219+4*t}], {rb} offset:{off+2048}")

    def q_reads(t):
        if not PREX:
            a(f"ds_read_b128 v[{64+4*t}:{67+4*t}], v45 offset:{64*t}")
        rb = "v44" if t < 8 else "v47"
        off = WQ_OFF + 32768 * ((t >> 2) & 1) + 4096 * (t & 3)
        a(f"ds_read_b64_tr_b16 v[{128+4*t}:{129+4*t}], {rb} offset:{off}")
        a(f"ds_read_b64_tr_b16 v[{130+4*t}:{131+4*t}], {rb} offset:{off+2048}")
    q_reads(0)
    for t in range(4):
        a(f"s_waitcnt lgkmcnt({NR*(3-t)+NR})")
        c = "0" if t == 0 else "v[232:235]"
        a(f"v_mfma_f32_16x16x32_bf16 v[232:235], v[{216+4*t}:{219+4*t}], v[{200+4*t}:{203+4*t}], {c}")
    for t in range(1, D + 1):
        q_reads(t)
    for t in range(16):
        ahead = min(D, 15 - t)
        a(f"s_waitcnt lgkmcnt({NR*ahead})")
        acc = 192 + 4 * (t & 1)
        c = "0" if t < 2 else f"v[{acc}:{acc+3}]"
        a(f"v_mfma_f32_16x16x32_bf16 v[{acc}:{acc+3}], v[{128+4*t}:{131+4*t}], v[{64+4*t}:{67+4*t}], {c}")
        if t + D + 1 < 16:
            q_reads(t + D + 1)
    a(f"""s_lshl_b32 s6, s54, 1
    s_add_u32 s6, s6, s56
    s_mul_i32 s6, s6, {4*7168}
    s_lshl_b32 s7, s55, 8
    s_add_u32 s6, s6, s7
    s_lshl_b32 s7, s5, 6
    s_add_u32 s6, s6, s7
    s_add_u32 s6, s6, {WS_GU}
    s_movk_i32 s7, 7168
    v_mul_lo_u32 v58, v4, s7
    v_lshl_add_u32 v58, v3, 4, v58
    v_lshlrev_b32 v59, 7, v4
    v_lshl_add_u32 v59, v3, 3, v59
    s_lshl_b32 s7, s5, 5
    s_add_u32 s7, s7, {L_Q}
    v_add_u32 v59, s7, v59
    v_cmp_gt_u32 vcc, 4, v4
    s_and_saveexec_b64 s[62:63], vcc""")
    a.vmop(f"buffer_store_dwordx4 v[232:235], v58, {R(sDN if (SKIP and MAP) else sWS)}, s6 offen sc1", "gu")
    a(f"""s_nop 4
    v_add_f32 v192, v192, v196
    v_add_f32 v193, v193, v197
    v_add_f32 v194, v194, v198
    v_add_f32 v195, v195, v199
    v_cvt_pk_bf16_f32 v192, v192, v193
    v_cvt_pk_bf16_f32 v193, v194, v195
    ds_write_b64 v59, v[192:193]
    s_mov_b64 exec, s[62:63]
    v_lshlrev_b32 v59, 7, v6
    v_lshl_add_u32 v59, v3, 4, v59
    v_add_u32 v59, {L_Q}, v59
    s_waitcnt lgkmcnt(0)
    s_barrier""")
    ts(a, 4)
    a("""ds_read_b128 v[64:67], v59
    ds_read_b128 v[68:71], v59 offset:64""")
    a(f"""s_lshl_b32 s6, s52, 17
    s_lshr_b32 s7, s3, 4
    s_lshl_b32 s7, s7, 14
    s_add_u32 s6, s6, s7
    s_lshl_b32 s7, s53, 2
    s_add_u32 s7, s7, s5
    s_lshl_b32 s7, s7, 10
    s_add_u32 s6, s6, s7
    s_and_b32 s7, s3, 15
    s_lshl_b32 s7, s7, 4
    s_add_u32 s6, s6, s7
    s_add_u32 s6, s6, {WS_QL}
    v_lshlrev_b32 v58, 15, v4
    v_lshl_add_u32 v58, v3, 8, v58
    s_mov_b32 s7, {f2u(QSCALE):#x}""")
    a.wait_vm("wuk", extra="lgkmcnt(0)")
    for t in range(2):
        for q in range(2):
            b = 12 + 8 * q + 4 * t
            c = "0" if t == 0 else f"v[{72+4*q}:{75+4*q}]"
            a(f"v_mfma_f32_16x16x32_bf16 v[{72+4*q}:{75+4*q}], v[{b}:{b+3}], v[{64+4*t}:{67+4*t}], {c}")
    a("""v_cmp_gt_u32 vcc, 4, v4
    s_and_saveexec_b64 s[62:63], vcc
    s_nop 7""")
    for i in range(8):
        a(f"v_mul_f32 v{72+i}, s7, v{72+i}")
    for i in range(4):
        a(f"v_cvt_pk_bf16_f32 v{72+i}, v{72+2*i}, v{73+2*i}")
    a.vmop(f"buffer_store_dwordx4 v[72:75], v58, {R(sWS)}, s6 offen sc1", "ql")
    a("s_mov_b64 exec, s[62:63]")
    ts(a, 5)
    if PF == 'late':
        prefetch('a')
    a("s_waitcnt vmcnt(0)")
    ts(a, 6)
    if TS:
        a(f"""s_waitcnt lgkmcnt(0)
        s_cmp_lg_u32 s5, 0
        s_cbranch_scc1 A_END
        v_mov_b32 v250, 0""")
        for p in range(7):
            a(f"v_writelane_b32 v250, s{64+2*p}, {p}")
        a(f"""s_lshl_b32 s6, s2, 7
        s_add_u32 s6, s6, {WS_TS}
        v_lshlrev_b32 v251, 2, v1
        v_cmp_gt_u32 vcc, 7, v1
        s_and_saveexec_b64 s[62:63], vcc
        buffer_store_dword v250, v251, {R(sWS)}, s6 offen""")
    a.label("A_END")
    a("s_endpgm")


def part_b(a, env):
    g = env
    L_QL, L_P, L_Q, L_X, L_MX, L_LS, L_CL, L_CT, L_H1, L_DN, WQ_OFF, FF_OFF, L_UV, L_WO = [g[k] for k in 'L_QL L_P L_Q L_X L_MX L_LS L_CL L_CT L_H1 L_DN WQ_OFF FF_OFF L_UV L_WO'.split()]
    if MAP:
        a("""s_bfe_u32 s6, s2, 0x20003      ; k
        s_lshl_b32 s7, s6, 1
        s_add_u32 s7, s7, s2
        s_and_b32 s7, s7, 7
        s_lshl_b32 s6, s6, 3
        s_add_u32 s3, s6, s7           ; h = ((x+2k)&7) + 8k""")
    a(f"""s_lshr_b32 s6, s57, 5          ; b
    s_lshl_b32 s6, s6, 1
    s_add_u32 s6, s6, s58
    s_lshl_b32 s6, s6, 14
    s_lshl_b32 s7, s5, 12
    s_add_u32 s6, s6, s7
    s_add_u32 s6, s6, {WS_QL}
    s_add_u32 s7, s6, 131072""")
    for dh in range(2):
        for tt in range(4):
            b = 128 + 16 * dh + 4 * tt
            a.vmop(f"buffer_load_dwordx4 v[{b}:{b+3}], v31, {R(sWS)}, s{6+dh} offen offset:{1024*tt}", "qlr")
    a(f"""s_mul_i32 s6, s5, 7168
    s_lshl_b32 s7, s59, 8
    s_add_u32 s6, s6, s7
    s_add_u32 s6, s6, {WS_GU}
    v_lshlrev_b32 v58, 2, v1""")
    for km in range(8):
        a.vmop(f"buffer_load_dword v{160+km}, v58, {R(sWS)}, s6 offen", "gur")
        if km < 7:
            a(f"s_add_u32 s6, s6, {4*7168}")
    a("""v_lshrrev_b32 v7, 3, v1
    v_and_b32 v2, 7, v1
    v_lshlrev_b32 v28, 1, v3
    v_xor_b32 v2, v2, v28
    v_lshlrev_b32 v2, 4, v2
    v_lshl_add_u32 v30, v7, 10, v2""")
    a(f"""s_lshl_b32 s6, s59, 6
    s_lshl_b32 s7, s5, 4
    s_add_u32 s6, s6, s7
    s_lshl_b32 s6, s6, 10
    s_lshl_b32 s7, s60, 7
    s_add_u32 s6, s6, s7
    s_lshl_b32 s7, s5, 11
    s_add_u32 m0, s7, {L_DN}""")
    a.vmop(f"s_nop 0\nbuffer_load_dwordx4 v30, {R(sDN)}, s6 offen{nt('dn')} lds", "dn")
    a("s_add_u32 s6, s6, 8192\ns_add_u32 m0, m0, 1024")
    a.vmop(f"s_nop 0\nbuffer_load_dwordx4 v30, {R(sDN)}, s6 offen{nt('dn')} lds", "dn")
    for k in range(8):
        a(f"v_xor_b32 v{32+k}, {k << 5}, v31")
    a("""s_lshl_b32 s61, s57, 17
    s_lshl_b32 s7, s5, 15
    s_add_u32 s61, s61, s7
    s_mov_b32 m0, s7""")

    def ckv_dma(k0, k1):
        for i in range(k0, k1):
            if i % 4 == 0 or i == k0:
                if "c" in ROT:
                    a(f"s_lshl_b32 s7, s5, 15\ns_add_u32 m0, s7, {4096*(i//4)}\ns_lshl_b32 s6, s58, 14\ns_xor_b32 s6, s6, {4096*(i//4)}\ns_add_u32 s6, s6, s61")
                else:
                    a(f"s_lshl_b32 s7, s5, 15\ns_add_u32 m0, s7, {4096*(i//4)}\ns_add_u32 s6, s61, {4096*(i//4)}")
            a.vmop(f"buffer_load_dwordx4 v{200 + (i & 7)}, {R(sCKV)}, s6 offen offset:{1024*(i&3)}{nt('ckv')} lds", "ckv0" if i < 16 else "ckv1")
    ckv_dma(0, NC0)
    a(f"""v_lshl_add_u32 v2, v3, 2, v5   ; rowl
    v_and_b32 v7, 1, v6
    v_lshrrev_b32 v44, 1, v6
    v_lshlrev_b32 v7, 3, v7
    v_lshl_add_u32 v56, v44, 4, v7 ; cc
    v_and_b32 v7, 1, v3
    v_lshlrev_b32 v7, 1, v7
    v_lshrrev_b32 v44, 1, v5
    v_add_u32 v7, v7, v44
    v_lshlrev_b32 v7, 1, v7        ; f3
    s_lshl_b32 s6, s5, 1
    v_xor_b32 v7, s6, v7
    v_lshl_add_u32 v7, v7, 4, v56
    v_lshl_add_u32 v44, v2, 7, v7
    v_add_u32 v47, 0x10000, v44
    v_add_u32 v57, {L_DN}, v44
    v_lshlrev_b32 v45, 10, v6
    v_lshl_add_u32 v45, v3, 4, v45
    v_add_u32 v45, {L_X}, v45
    v_lshrrev_b32 v46, 2, v1
    v_lshlrev_b32 v46, 6, v46
    v_and_b32 v7, 1, v6
    v_lshl_add_u32 v46, v7, 5, v46
    v_lshrrev_b32 v7, 1, v6
    v_lshl_add_u32 v46, v7, 3, v46
    s_lshl_b32 s6, s5, 10
    s_add_u32 s6, s6, {L_X}
    v_add_u32 v46, s6, v46""")
    a("""v_and_b32 v7, 7, v4
    v_lshlrev_b32 v7, 1, v7
    s_lshl_b32 s6, s5, 5
    v_add_u32 v58, s6, v4
    v_lshlrev_b32 v58, 10, v58""")
    for tq in range(4):
        a(f"v_add_u32 v59, {4*tq}, v3\nv_xor_b32 v59, v59, v7\nv_lshl_add_u32 v{24+tq}, v59, 4, v58")
    a(f"v_add_u32 v28, {L_QL}, v31")
    a("""v_and_b32 v7, 1, v3
    v_lshl_add_u32 v7, v7, 2, v5
    v_lshlrev_b32 v7, 1, v7
    v_lshl_add_u32 v58, v2, 10, v56
    s_lshl_b32 s6, s5, 8
    v_add_u32 v58, s6, v58""")
    for n in range(8):
        a(f"v_xor_b32 v59, {2*n}, v7\nv_lshl_add_u32 v{32+n}, v59, 4, v58\nv_add_u32 v{8+n}, 0x10000, v{32+n}")
    a("""v_lshlrev_b32 v58, 1, v3
    v_xor_b32 v58, v58, v4
    v_lshlrev_b32 v58, 4, v58
    v_lshl_add_u32 v192, v3, 13, v58
    v_xor_b32 v193, 0x80, v192
    s_and_b32 s6, s4, 3
    s_lshl_b32 s6, s6, 7
    s_lshl_b32 s7, s5, 5
    s_add_u32 s6, s6, s7
    s_lshl_b32 s6, s6, 13
    s_lshl_b32 s7, s3, 8
    s_add_u32 s52, s6, s7
    v_lshrrev_b32 v58, 5, v1
    v_and_b32 v59, 31, v1""")
    for q in range(4):
        a(f"""v_add_u32 v60, {2*q}, v58
        v_lshlrev_b32 v60, 1, v60
        v_xor_b32 v60, v60, v59
        v_lshlrev_b32 v60, 4, v60
        v_lshl_add_u32 v{194+q}, v58, 10, v60""")
    a("""s_lshl_b32 s6, s3, 17
    s_lshl_b32 s7, s5, 15
    s_add_u32 s6, s6, s7
    s_lshr_b32 s7, s4, 2
    s_lshl_b32 s7, s7, 9
    s_add_u32 s53, s6, s7""")
    wstate = [0]
    a("""s_lshr_b32 s54, s4, 2
    s_lshl_b32 s54, s54, 17
    s_and_b32 s55, s4, 3
    s_lshl_b32 s55, s55, 13""")

    def wload(n):
        for _ in range(n):
            i = wstate[0]
            if i >= 24:
                return
            wstate[0] += 1
            if "w" in ROT:
                if i < 8:
                    a("s_add_u32 s6, s52, s54")
                    a.vmop(f"buffer_load_dwordx4 a[{4*i}:{4*i+3}], v{192+(i&1)}, {R(sWUV)}, s6 offen{nt('wuv')}", "wuv")
                    a(f"s_add_u32 s54, s54, {4*8192}\ns_and_b32 s54, s54, {8*4*8192-1}")
                else:
                    i -= 8
                    a("s_add_u32 s6, s53, s55")
                    a.vmop(f"buffer_load_dwordx4 a[{32+4*i}:{35+4*i}], v{194+(i&3)}, {R(sWO)}, s6 offen{nt('wo')}", "wo")
                    a("s_add_u32 s55, s55, 2048\ns_and_b32 s55, s55, 32767")
            elif i < 8:
                a.vmop(f"buffer_load_dwordx4 a[{4*i}:{4*i+3}], v{192+(i&1)}, {R(sWUV)}, s52 offen{nt('wuv')}", "wuv")
                a(f"s_add_u32 s52, s52, {4*8192}")
            else:
                i -= 8
                a.vmop(f"buffer_load_dwordx4 a[{32+4*i}:{35+4*i}], v{194+(i&3)}, {R(sWO)}, s53 offen{nt('wo')}", "wo")
                a("s_add_u32 s53, s53, 2048")
    a(f"""s_lshl_b32 s6, s5, 12
    v_add_u32 v58, s6, v28""")
    a.wait_vm("qlr")
    for tt in range(4):
        for k in range(4):
            x, y, o = 128 + 4 * tt + k, 144 + 4 * tt + k, 64 + 4 * tt + k
            a(f"""v_lshlrev_b32 v59, 16, v{x}
            v_lshlrev_b32 v60, 16, v{y}
            v_and_b32 v61, 0xffff0000, v{x}
            v_and_b32 v62, 0xffff0000, v{y}
            v_add_f32 v59, v59, v60
            v_add_f32 v61, v61, v62
            v_cvt_pk_bf16_f32 v{o}, v59, v61""")
        a(f"ds_write_b128 v58, v[{64+4*tt}:{67+4*tt}] offset:{1024*tt}")
    a("s_waitcnt lgkmcnt(0)\ns_barrier")
    ts(a, 8)
    ckv_dma(NC0, 32)
    for t in range(16):
        a(f"ds_read_b128 v[{64+4*t}:{67+4*t}], v28 offset:{1024*t}")
    a.wait_vm("gur")
    a(f"""v_add_f32 v160, v160, v162
    v_add_f32 v164, v164, v166
    v_add_f32 v161, v161, v163
    v_add_f32 v165, v165, v167
    v_add_f32 v160, v160, v164
    v_add_f32 v161, v161, v165
    v_mul_f32 v162, {f2u(-LOG2E):#x}, v160
    v_exp_f32 v162, v162
    v_and_b32 v163, 32, v1
    v_lshl_add_u32 v163, v5, 3, v163
    v_add_f32 v162, 1.0, v162
    v_rcp_f32 v162, v162
    v_bfe_u32 v164, v1, 4, 1
    v_lshl_add_u32 v163, v164, 2, v163
    v_add_u32 v163, v163, v6
    v_mul_f32 v160, v160, v162
    v_mul_f32 v160, v160, v161
    v_cvt_pk_bf16_f32 v160, v160, v160
    v_lshlrev_b32 v163, 1, v163
    s_lshl_b32 s6, s5, 7
    s_add_u32 s6, s6, {L_H1}
    v_add_u32 v163, s6, v163
    ds_write_b16 v163, v160""")
    for kb in range(2):
        a.wait_vm('ckv%d' % kb)
        if kb == 1:
            wload(W1)
        for t in range(16):
            a(f"ds_read_b128 v[{128+4*t}:{131+4*t}], v{24+(t&3)} offset:{(t>>2)*256+kb*16384}")
        for t in range(16):
            a(f"s_waitcnt lgkmcnt({15-t})")
            c = "0" if t == 0 else f"v[{48+4*kb}:{51+4*kb}]"
            a(f"v_mfma_f32_16x16x32_bf16 v[{48+4*kb}:{51+4*kb}], v[{128+4*t}:{131+4*t}], v[{64+4*t}:{67+4*t}], {c}")
    ts(a, 9)
    a(f"""v_lshlrev_b32 v58, 4, v4       ; head*16
    s_lshl_b32 s6, s5, 2
    s_add_u32 s6, s6, {L_MX}
    v_add_u32 v59, s6, v58         ; MX[head][w]
    v_add_u32 v58, {L_MX}, v58
    s_nop 4
    v_max3_f32 v60, v48, v49, v50
    v_max3_f32 v60, v60, v51, v52
    v_max3_f32 v60, v60, v53, v54
    v_max_f32 v60, v60, v55""")
    xg_reduce(a, "v60", "v61", "v_max_f32")
    a(f"""ds_write_b32 v59, v60
    s_waitcnt lgkmcnt(0)
    s_barrier
    ds_read_b128 v[128:131], v58
    s_waitcnt lgkmcnt(0)
    v_max3_f32 v60, v128, v129, v130
    v_max_f32 v60, v60, v131        ; m""")
    wload(W2)
    for i in range(8):
        a(f"v_sub_f32 v{48+i}, v{48+i}, v60")
    for i in range(8):
        a(f"v_exp_f32 v{48+i}, v{48+i}")
    a("""s_nop 0
    v_add_f32 v61, v48, v49
    v_add_f32 v62, v50, v51
    v_add_f32 v63, v52, v53
    v_add_f32 v128, v54, v55
    v_add_f32 v61, v61, v62
    v_add_f32 v63, v63, v128
    v_add_f32 v61, v61, v63""")
    for i in range(4):
        a(f"v_cvt_pk_bf16_f32 v{48+i}, v{48+2*i}, v{49+2*i}")
    a(f"""s_lshl_b32 s6, s5, 10
    s_add_u32 s6, s6, {L_P}
    v_add_u32 v62, s6, v31
    ds_write_b128 v62, v[48:51]""")
    xg_reduce(a, "v61", "v63", "v_add_f32")
    a(f"""ds_write_b32 v59, v61 offset:{L_LS-L_MX}
    v_add_u32 v62, {L_P}, v31
    s_waitcnt lgkmcnt(0)
    s_barrier""")
    for u in range(4):
        a(f"ds_read_b128 v[{64+4*u}:{67+4*u}], v62 offset:{1024*u}")
    a(f"ds_read_b128 v[52:55], v58 offset:{L_LS-L_MX}")
    ts(a, 10)

    def pv_reads(u):
        base = 128 + 32 * (u & 1)
        ab = 32 if u < 2 else 8
        off = (u & 1) * 32768
        for n in range(8):
            a(f"ds_read_b64_tr_b16 v[{base+4*n}:{base+4*n+1}], v{ab+n} offset:{off}")
            a(f"ds_read_b64_tr_b16 v[{base+4*n+2}:{base+4*n+3}], v{ab+n} offset:{off+16384}")
    pv_reads(0)
    for u in range(4):
        if u < 3:
            pv_reads(u + 1)
        wload(W3)
        base = 128 + 32 * (u & 1)
        for n in range(8):
            rem = (16 if u < 3 else 0) + 14 - 2 * n
            a(f"s_waitcnt lgkmcnt({min(rem, 15)})")
            c = "0" if u == 0 else f"v[{80+4*n}:{83+4*n}]"
            a(f"v_mfma_f32_16x16x32_bf16 v[{80+4*n}:{83+4*n}], v[{base+4*n}:{base+4*n+3}], v[{64+4*u}:{67+4*u}], {c}")
    if not WPOST:
        wload(24)
    ts(a, 11)
    a("s_barrier")
    a(f"""v_add_f32 v52, v52, v53
    v_add_f32 v54, v54, v55
    v_add_f32 v61, v52, v54         ; L
    s_mov_b32 s61, 0xfffffffe
    s_lshr_b32 s7, s57, 5           ; b
    s_lshl_b32 s6, s58, 6
    s_add_u32 s6, s6, s7            ; (hg*16)*4 + b
    s_lshl_b32 s6, s6, 2
    s_and_b32 s7, s57, 3
    s_add_u32 s6, s6, s7
    s_lshl_b32 s6, s6, 3
    s_bfe_u32 s7, s57, 0x30002      ; (T>>2)&7 = s>>2
    s_add_u32 s6, s6, s7
    s_lshl_b32 s6, s6, 3
    s_add_u32 s6, s6, {WS_STATS}
    v_lshlrev_b32 v58, 10, v4       ; head * 1024
    v_min_u32 v60, s61, v60
    v_min_u32 v61, s61, v61""")
    a(f"""s_lshl_b32 s7, s58, 6
    s_add_u32 s7, s7, s5
    s_lshl_b32 s7, s7, 7
    s_add_u32 s7, s7, s57
    s_lshl_b32 s7, s7, 8
    s_add_u32 s7, s7, {WS_PART}
    v_lshlrev_b32 v59, 17, v4
    v_lshl_add_u32 v59, v3, 4, v59""")
    for np_ in range(4):
        b0 = 80 + 8 * np_
        a(f"""v_cvt_pk_bf16_f32 v{b0}, v{b0}, v{b0+1}
        v_cvt_pk_bf16_f32 v{b0+1}, v{b0+2}, v{b0+3}
        v_cvt_pk_bf16_f32 v{b0+2}, v{b0+4}, v{b0+5}
        v_cvt_pk_bf16_f32 v{b0+3}, v{b0+6}, v{b0+7}
        v_min_u32 v{b0}, s61, v{b0}
        v_min_u32 v{b0+1}, s61, v{b0+1}
        v_min_u32 v{b0+2}, s61, v{b0+2}
        v_min_u32 v{b0+3}, s61, v{b0+3}""")
        a.vmop(f"buffer_store_dwordx4 v[{b0}:{b0+3}], v59, {R(sWS)}, s7 offen offset:{64*np_} sc1", "part")
    a("""s_cmp_lg_u32 s5, 0
    s_cbranch_scc1 NOSTAT
    v_cmp_gt_u32 vcc, 16, v1
    s_and_saveexec_b64 s[62:63], vcc""")
    a(f"buffer_store_dwordx2 v[60:61], v58, {R(sWS)}, s6 offen sc1")
    a("s_mov_b64 exec, s[62:63]")
    a.label("NOSTAT")
    if WPOST:
        wload(24)
    a(f"""s_lshl_b32 s6, s5, 13
    v_add_u32 v58, s6, v31
    s_lshl_b32 s6, s5, 14
    s_add_u32 s6, s6, {L_WO}
    v_add_u32 v59, s6, v31""")
    a.wait_vm("wuv", "wo")
    if "w" in ROT:
        a("""s_lshr_b32 s54, s4, 2
        s_lshl_b32 s54, s54, 12
        s_and_b32 s55, s4, 3
        s_lshl_b32 s55, s55, 12""")
        for i in range(8):
            if i % 4 == 0:
                a(f"s_xor_b32 s6, s54, {1024*i}\nv_add_u32 v60, s6, v58")
            a(f"ds_write_b128 v60, a[{4*i}:{4*i+3}] offset:{L_UV+1024*(i&3)}")
        for i in range(16):
            if i % 4 == 0:
                a(f"s_add_u32 s6, s55, {1024*i}\ns_and_b32 s6, s6, 16383\nv_add_u32 v60, s6, v59")
            a(f"ds_write_b128 v60, a[{32+4*i}:{35+4*i}] offset:{1024*(i&3)}")
    else:
        for i in range(8):
            a(f"ds_write_b128 v58, a[{4*i}:{4*i+3}] offset:{L_UV+1024*i}")
        for i in range(16):
            a(f"ds_write_b128 v59, a[{32+4*i}:{35+4*i}] offset:{1024*i}")
    a(f"""v_lshlrev_b32 v58, 7, v6
    v_lshl_add_u32 v58, v3, 4, v58
    v_add_u32 v58, {L_H1}, v58
    ds_read_b128 v[64:67], v58
    ds_read_b128 v[68:71], v58 offset:64""")
    for t in range(2):
        b = 72 + 4 * t
        a(f"ds_read_b64_tr_b16 v[{b}:{b+1}], v57 offset:{4096*t}")
        a(f"ds_read_b64_tr_b16 v[{b+2}:{b+3}], v57 offset:{4096*t+2048}")
    a(f"""s_lshl_b32 s6, s60, 1
    s_lshr_b32 s7, s5, 1
    s_add_u32 s6, s6, s7
    s_mul_i32 s6, s6, {SP_ROWS*128}
    s_add_u32 s7, s59, 128
    s_lshl_b32 s7, s7, 7
    s_add_u32 s6, s6, s7
    s_and_b32 s7, s5, 1
    s_lshl_b32 s7, s7, 6
    s_add_u32 s6, s6, s7
    s_add_u32 s6, s6, {WS_SP}
    s_mov_b32 s7, {16*SP_ROWS*128}
    v_mul_lo_u32 v63, v4, s7
    v_lshl_add_u32 v63, v3, 4, v63
    s_waitcnt lgkmcnt(0)
    v_mfma_f32_16x16x32_bf16 v[80:83], v[72:75], v[64:67], 0
    v_mfma_f32_16x16x32_bf16 v[80:83], v[76:79], v[68:71], v[80:83]
    v_cmp_gt_u32 vcc, 4, v4
    s_and_saveexec_b64 s[62:63], vcc
    s_nop 7
    v_min_u32 v80, s61, v80
    v_min_u32 v81, s61, v81
    v_min_u32 v82, s61, v82
    v_min_u32 v83, s61, v83
    buffer_store_dwordx4 v[80:83], v63, {R(sWS)}, s6 offen sc1
    s_mov_b64 exec, s[62:63]""")
    ts(a, 12)
    for q in range(2):
        a(f"""s_lshl_b32 s6, s5, 2
        s_add_u32 s6, s6, {2*q}
        v_xor_b32 v58, s6, v7
        v_lshl_add_u32 v58, v58, 4, v56
        v_lshl_add_u32 v{24+q}, v2, 8, v58""")
    for q in range(4):
        a(f"""s_lshl_b32 s6, s5, 3
        s_add_u32 s6, s6, {2*q}
        s_and_b32 s7, s6, 15
        s_and_b32 s6, s6, 16
        v_xor_b32 v58, s7, v7
        v_add_u32 v58, s6, v58
        v_lshl_add_u32 v58, v58, 4, v56
        v_lshl_add_u32 v58, v2, 9, v58
        v_add_u32 v{26+q}, {L_WO}, v58""")
    a(f"""v_lshlrev_b32 v30, 8, v6
    v_lshl_add_u32 v30, v3, 4, v30
    v_add_u32 v30, {L_CL}, v30""")
    a(f"""s_lshl_b32 s54, s3, 2
    s_and_b32 s7, s4, 3
    s_add_u32 s54, s54, s7
    s_lshl_b32 s54, s54, 2
    s_add_u32 s54, s54, s5
    s_lshl_b32 s54, s54, 13
    s_add_u32 s54, s54, {WS_PART}
    s_add_u32 s55, s54, 4096
    s_lshl_b32 s6, s3, 2
    s_add_u32 s6, s6, s5
    s_lshl_b32 s6, s6, 8
    s_add_u32 s6, s6, {WS_STATS}
    v_lshlrev_b32 v58, 6, v3
    s_mov_b32 s7, {SPIN_MAX}""")

    def part_loads():
        for i in range(8):
            a(f"buffer_load_dwordx4 v[{80+4*i}:{83+4*i}], v31, {R(sWS)}, s{54 if i < 4 else 55} offen offset:{1024*(i&3)} sc1")

    OB = 160 if PRE else 128

    def uv_reads():
        for t in range(4):
            for q in range(2):
                b = 128 + 8 * t + 4 * q
                a(f"ds_read_b64_tr_b16 v[{b}:{b+1}], v{24+q} offset:{L_UV+8192*t}")
                a(f"ds_read_b64_tr_b16 v[{b+2}:{b+3}], v{24+q} offset:{L_UV+8192*t+4096}")

    def o_reads(ts_):
        for t in ts_:
            for q in range(4):
                b = OB + 16 * t + 4 * q
                a(f"ds_read_b64_tr_b16 v[{b}:{b+1}], v{26+q} offset:{16384*t}")
                a(f"ds_read_b64_tr_b16 v[{b+2}:{b+3}], v{26+q} offset:{16384*t+8192}")

    def stat_check(pre=False):
        for i in range(4):
            a(f"buffer_load_dwordx4 v[{64+4*i}:{67+4*i}], v58, {R(sWS)}, s6 offen offset:{16*i} sc1")
        if pre:
            a("s_waitcnt lgkmcnt(0)\ns_barrier")
            uv_reads()
            o_reads(range(4))
        a("""s_waitcnt vmcnt(0)
        v_max3_u32 v59, v64, v65, v66""")
        for i in range(6):
            a(f"v_max3_u32 v59, v59, v{67+2*i}, v{68+2*i}")
        a("""v_max_u32 v59, v59, v79
        v_cmp_eq_u32 vcc, -1, v59""")
    if CPOLL:
        part_loads()
    if CPOLL or PRE:
        stat_check(PRE)
        a("s_cbranch_vccz " + ("E2P_MID" if CPOLL else "E2S_DONE"))
    a.label("E2S_POLL")
    stat_check()
    a("""s_cbranch_vccz E2S_DONE
    s_sub_u32 s7, s7, 1
    s_cmp_eq_u32 s7, 0
    s_cbranch_scc1 E2S_DONE
    s_sleep 1
    s_branch E2S_POLL""")
    a.label("E2S_DONE")
    a(f"s_mov_b32 s7, {SPIN_MAX}")
    a.label("E2P_POLL")
    part_loads()
    a.label("E2P_MID")
    ts(a, 13)
    a("""v_max3_f32 v59, v64, v66, v68
    v_max3_f32 v59, v59, v70, v72
    v_max3_f32 v59, v59, v74, v76
    v_max_f32 v59, v59, v78""")
    xg_reduce(a, "v59", "v60", "v_max_f32")
    for i in range(8):
        a(f"v_sub_f32 v{112+i}, v{64+2*i}, v59")
    for i in range(8):
        a(f"v_exp_f32 v{112+i}, v{112+i}")
    a("s_nop 0\nv_mul_f32 v60, v112, v65")
    for i in range(1, 8):
        a(f"v_fmac_f32 v60, v{112+i}, v{65+2*i}")
    xg_reduce(a, "v60", "v61", "v_add_f32")
    a("v_rcp_f32 v60, v60\ns_nop 0")
    for i in range(8):
        a(f"v_mul_f32 v{112+i}, v{112+i}, v60")
    a("""s_waitcnt vmcnt(0)
    v_max3_u32 v59, v80, v81, v82""")
    for i in range(14):
        a(f"v_max3_u32 v59, v59, v{83+2*i}, v{84+2*i}")
    a("""v_max_u32 v59, v59, v111
    v_cmp_eq_u32 vcc, -1, v59
    s_cbranch_vccz E2P_DONE
    s_sub_u32 s7, s7, 1
    s_cmp_eq_u32 s7, 0
    s_cbranch_scc1 E2P_DONE
    s_branch E2P_POLL""")
    a.label("E2P_DONE")
    ts(a, 14)
    for i in range(8):
        for k in range(4):
            src = 80 + 4 * i + k
            a(f"v_lshlrev_b32 v59, 16, v{src}\nv_and_b32 v60, 0xffff0000, v{src}")
            if i == 0:
                a(f"v_mul_f32 v{120+2*k}, v112, v59\nv_mul_f32 v{121+2*k}, v112, v60")
            else:
                a(f"v_fmac_f32 v{120+2*k}, v{112+i}, v59\nv_fmac_f32 v{121+2*k}, v{112+i}, v60")
    for k in range(8):
        xg_reduce(a, f"v{120+k}", "v59", "v_add_f32")
    for k in range(4):
        a(f"v_cvt_pk_bf16_f32 v{120+k}, v{120+2*k}, v{121+2*k}")
    a(f"""s_lshl_b32 s6, s5, 8
    s_add_u32 s6, s6, {L_CL}
    v_lshlrev_b32 v59, 4, v4
    v_add_u32 v59, s6, v59
    ds_write_b128 v59, v[120:123]
    s_waitcnt lgkmcnt(0)
    s_barrier""")
    for t in range(4):
        a(f"ds_read_b128 v[{64+4*t}:{67+4*t}], v30 offset:{64*t}")
    if not PRE:
        uv_reads()
    for t in range(4):
        for q in range(2):
            b = 128 + 8 * t + 4 * q
            if not PRE:
                a(f"s_waitcnt lgkmcnt({14 - 4*t - 2*q})")
            elif q == 0:
                a(f"s_waitcnt lgkmcnt({3 - t})")
            c = "0" if t == 0 else f"v[{80+4*q}:{83+4*q}]"
            a(f"v_mfma_f32_16x16x32_bf16 v[{80+4*q}:{83+4*q}], v[{b}:{b+3}], v[{64+4*t}:{67+4*t}], {c}")
    if not PRE:
        o_reads((2, 3))
    a(f"""v_lshlrev_b32 v59, 8, v4
    v_lshl_add_u32 v59, v3, 4, v59
    s_lshl_b32 s6, s5, 6
    s_add_u32 s6, s6, {L_CT}
    v_add_u32 v59, s6, v59
    v_cmp_gt_u32 vcc, 4, v4
    s_nop 2
    v_cvt_pk_bf16_f32 v80, v80, v81
    v_cvt_pk_bf16_f32 v81, v82, v83
    v_cvt_pk_bf16_f32 v82, v84, v85
    v_cvt_pk_bf16_f32 v83, v86, v87
    s_and_saveexec_b64 s[62:63], vcc
    ds_write_b128 v59, v[80:83]
    s_mov_b64 exec, s[62:63]""")
    if not PRE:
        o_reads((0, 1))
    a("s_waitcnt lgkmcnt(0)\ns_barrier")
    a(f"v_add_u32 v30, {L_CT-L_CL}, v30")
    for t in range(4):
        a(f"ds_read_b128 v[{64+4*t}:{67+4*t}], v30 offset:{64*t}")
    for t in range(4):
        a(f"s_waitcnt lgkmcnt({3-t})")
        for q in range(4):
            b = OB + 16 * t + 4 * q
            c = "0" if t == 0 else f"v[{80+4*q}:{83+4*q}]"
            a(f"v_mfma_f32_16x16x32_bf16 v[{80+4*q}:{83+4*q}], v[{b}:{b+3}], v[{64+4*t}:{67+4*t}], {c}")
    a(f"""s_lshr_b32 s6, s4, 2
    s_lshl_b32 s6, s6, 3
    s_lshl_b32 s7, s5, 1
    s_add_u32 s6, s6, s7
    s_mul_i32 s6, s6, {SP_ROWS*128}
    s_lshl_b32 s7, s3, 2
    s_and_b32 s61, s4, 3
    s_add_u32 s7, s7, s61
    s_lshl_b32 s7, s7, 7
    s_add_u32 s6, s6, s7
    s_add_u32 s6, s6, {WS_SP}
    s_add_u32 s7, s6, {SP_ROWS*128}
    s_mov_b32 s61, 0xfffffffe
    v_cmp_gt_u32 vcc, 4, v4
    s_and_saveexec_b64 s[62:63], vcc
    s_nop 2""")
    for i in range(16):
        a(f"v_min_u32 v{80+i}, s61, v{80+i}")
    a(f"""buffer_store_dwordx4 v[80:83], v63, {R(sWS)}, s6 offen sc1
    buffer_store_dwordx4 v[84:87], v63, {R(sWS)}, s6 offen offset:64 sc1
    buffer_store_dwordx4 v[88:91], v63, {R(sWS)}, s7 offen sc1
    buffer_store_dwordx4 v[92:95], v63, {R(sWS)}, s7 offen offset:64 sc1
    s_mov_b64 exec, s[62:63]""")
    ts(a, 15)
    a(f"""s_cmp_ge_u32 s2, 64
    s_cbranch_scc1 B_FIN
    v_lshrrev_b32 v2, 3, v0
    v_and_b32 v7, 7, v0            ; chunk
    s_mul_i32 s6, s2, {SP_ROWS*128}
    s_add_u32 s6, s6, {WS_SP}
    v_lshlrev_b32 v58, 4, v0       ; tid*16
    s_lshl_b32 s7, s2, 6
    v_lshlrev_b32 v59, 1, v0
    buffer_load_ushort v28, v59, {R(sX)}, s7 offen
    v_mov_b32 v24, 0
    v_mov_b32 v25, 0
    v_mov_b32 v26, 0
    v_mov_b32 v27, 0
    s_add_u32 s52, s6, 4096
    s_add_u32 s53, s6, 8192
    s_add_u32 s54, s6, 12288
    s_add_u32 s55, s6, 16384
    v_cmp_gt_u32 s[56:57], 28, v2
    s_mov_b32 s58, {SPIN_MAX}""")
    a.label("E3_POLL")
    a(f"""buffer_load_dwordx4 v[8:11], v58, {R(sWS)}, s6 offen sc1
    buffer_load_dwordx4 v[12:15], v58, {R(sWS)}, s52 offen sc1
    buffer_load_dwordx4 v[16:19], v58, {R(sWS)}, s53 offen sc1
    buffer_load_dwordx4 v[20:23], v58, {R(sWS)}, s54 offen sc1
    s_mov_b64 exec, s[56:57]
    buffer_load_dwordx4 v[24:27], v58, {R(sWS)}, s55 offen sc1
    s_mov_b64 exec, -1
    s_waitcnt vmcnt(0)
    v_max3_u32 v29, v8, v9, v10""")
    for i in range(8):
        a(f"v_max3_u32 v29, v29, v{11+2*i}, v{12+2*i}")
    a("""v_max_u32 v29, v29, v27
    v_cmp_eq_u32 vcc, -1, v29
    s_cbranch_vccz E3_DONE
    s_sub_u32 s58, s58, 1
    s_cmp_eq_u32 s58, 0
    s_cbranch_scc1 E3_DONE
    s_branch E3_POLL""")
    a.label("E3_DONE")
    ts(a, 16)
    for i in range(4):
        a(f"v_add_f32 v{8+i}, v{8+i}, v{12+i}\nv_add_f32 v{16+i}, v{16+i}, v{20+i}\nv_add_f32 v{8+i}, v{8+i}, v{16+i}")
    for r in list(range(8, 12)) + list(range(24, 28)):
        a(f"s_nop 1\nv_add_f32_dpp v{r}, v{r}, v{r} row_ror:8 row_mask:0xf bank_mask:0xf")
        xg_reduce(a, f"v{r}", "v29", "v_add_f32")
    L_R = L_QL
    a(f"""s_lshl_b32 s6, s5, 8
    s_add_u32 s6, s6, {L_R}
    v_lshlrev_b32 v30, 4, v7
    v_add_u32 v30, s6, v30
    v_cmp_gt_u32 vcc, 8, v1
    s_and_saveexec_b64 s[62:63], vcc
    ds_write_b128 v30, v[8:11]
    ds_write_b128 v30, v[24:27] offset:128
    s_mov_b64 exec, s[62:63]
    s_waitcnt lgkmcnt(0)
    s_barrier
    v_cmp_gt_u32 vcc, 32, v0
    s_and_saveexec_b64 s[62:63], vcc
    s_cbranch_execz B_FIN
    v_lshlrev_b32 v30, 2, v0
    v_add_u32 v30, {L_R}, v30""")
    for w in range(4):
        a(f"ds_read_b32 v{8+w}, v30 offset:{256*w}\nds_read_b32 v{12+w}, v30 offset:{256*w+128}")
    a(f"""s_waitcnt lgkmcnt(0)
    v_add_f32 v8, v8, v9
    v_add_f32 v10, v10, v11
    v_add_f32 v8, v8, v10           ; s
    v_add_f32 v12, v12, v13
    v_add_f32 v14, v14, v15
    v_add_f32 v12, v12, v14         ; ffn
    v_mul_f32 v13, {f2u(-LOG2E):#x}, v12
    v_exp_f32 v13, v13
    s_nop 0
    v_add_f32 v13, 1.0, v13
    v_rcp_f32 v13, v13
    s_nop 0
    v_mul_f32 v12, v12, v13         ; silu(ffn)
    v_lshlrev_b32 v28, 16, v28
    v_fmac_f32 v28, v8, v12
    v_cvt_pk_bf16_f32 v28, v28, v28
    buffer_store_short v28, v59, {R(sOUT)}, s7 offen""")
    a.label("B_FIN")
    if TS:
        a("s_mov_b64 exec, -1\ns_waitcnt vmcnt(0)")
        ts(a, 17)
        a(f"""s_waitcnt lgkmcnt(0)
        s_cmp_lg_u32 s5, 0
        s_cbranch_scc1 B_END
        v_mov_b32 v250, 0""")
        for p in range(7, 18):
            a(f"v_writelane_b32 v250, s{64+2*p}, {p}")
        a(f"""s_lshl_b32 s6, s2, 7
        s_add_u32 s6, s6, {WS_TS}
        v_lshlrev_b32 v251, 2, v1
        v_subrev_u32 v252, 7, v1
        v_cmp_gt_u32 vcc, 11, v252
        s_and_saveexec_b64 s[62:63], vcc
        buffer_store_dword v250, v251, {R(sWS)}, s6 offen""")
    a.label("B_END")
    a("s_endpgm")


def main():
    ref = open(f"cdna_kernels/{NAME}.s.ref").read()
    head = []
    for line in ref.split("\n"):
        if line.startswith("; @launch") or line.startswith("; Override") or line.startswith("; grid="):
            continue
        if line.startswith(";"):
            head.append(line)
        else:
            break
    ks = [kern("A"), kern("B")]
    out = "\n".join(head) + "\n"
    for txt, name, grid, lds in ks:
        out += f"; @launch kernel={name} grid=({grid},1,1) block=(256,1,1) lds={lds}\n"
    out += '.amdgcn_target "amdgcn-amd-amdhsa--gfx950"\n.text\n'
    for txt, name, grid, lds in ks:
        out += txt
    out += '.section .rodata,"a"\n'
    for txt, name, grid, lds in ks:
        out += f""".p2align 6
.amdhsa_kernel {name}
  .amdhsa_next_free_vgpr 512
  .amdhsa_next_free_sgpr 102
  .amdhsa_accum_offset 256
  .amdhsa_group_segment_fixed_size 0
  .amdhsa_kernarg_size 104
  .amdhsa_user_sgpr_count 2
  .amdhsa_user_sgpr_kernarg_segment_ptr 1
  .amdhsa_system_sgpr_workgroup_id_x 1
.end_amdhsa_kernel
"""
    dst = sys.argv[1] if len(sys.argv) > 1 else f"cdna_kernels/{NAME}.s"
    open(dst, "w").write(out)
    print("wrote", dst, len(out))


if __name__ == "__main__":
    main()
```
